```python
import torch

def _softmax(x, axis=-1):
    return torch.softmax(x, dim=axis)
def _gelu(x):
    return torch.nn.functional.gelu(x, approximate="tanh")
def _silu(x):
    return torch.nn.functional.silu(x)
def _sigmoid(x):
    return torch.sigmoid(x)
def _layernorm(x, axis=-1, eps=1e-5):
    m = x.mean(dim=axis, keepdim=True)
    v = x.var(dim=axis, keepdim=True, unbiased=False)
    return (x - m) / torch.sqrt(v + eps)
def _scatter_add(tgt, idx, src, axis=0):
    return tgt.clone().index_add_(axis, idx, src)
def _segment_sum(src, seg, n):
    out = torch.zeros((n,) + src.shape[1:], dtype=src.dtype)
    return out.index_add_(0, seg, src)
def _pad(x, pw):
    flat = tuple(v for pair in reversed(pw) for v in pair)
    return torch.nn.functional.pad(x, flat)

kernel_name = 'gated_mix__softmax_full_mha__linear_kernel_hedgehog__prompt'

def setup_inputs():

    _w = (lambda a: (lambda t: t.to(torch.bfloat16) if t.is_floating_point() else t)(torch.as_tensor(a)))
    def _A_setup():
        B, S, D = 1, 2048, 512
        return {
            "x": _w((lambda *s: torch.randn(*s, dtype=torch.bfloat16) * 0.05)(B, S, D)),
            "wqkv": _w((lambda *s: torch.randn(*s, dtype=torch.bfloat16) * 0.8)(D, 3 * D)),
            "wo": _w((lambda *s: torch.randn(*s, dtype=torch.bfloat16) * 0.05)(D, D)),
        }
    _A_in = _A_setup()

    def _B_setup():
        B, S, D, H = 1, 2048, 512, 32
        Dh = D // H
        return {
            "x": _w((lambda *s: torch.randn(*s, dtype=torch.bfloat16) * 0.05)(B, S, D)),
            "wqkv": _w((lambda *s: torch.randn(*s, dtype=torch.bfloat16) * 1.6)(D, 3 * D)),
            "w_phi": _w((lambda *s: torch.randn(*s, dtype=torch.bfloat16) * 1.6)(H, Dh, Dh) * (Dh ** -0.5)),
            "wo": _w((lambda *s: torch.randn(*s, dtype=torch.bfloat16) * 0.05)(D, D)),
        }
    _B_in = _B_setup()

    return {
        "A_x": _A_in["x"],
        "A_wqkv": _A_in["wqkv"],
        "A_wo": _A_in["wo"],
        "B_x": _B_in["x"],
        "B_wqkv": _B_in["wqkv"],
        "B_w_phi": _B_in["w_phi"],
        "B_wo": _B_in["wo"],
        "gate_w": _w((lambda *s: torch.randn(*s, dtype=torch.bfloat16) * 0.05)(512) * 16.0),
    }

def reference(A_x, A_wqkv, A_wo, B_x, B_wqkv, B_w_phi, B_wo, gate_w):
    def _A_ref(x, wqkv, wo):
        B, S, D = x.shape
        H = 32; Dh = D // H
        qkv = (lambda x, *d: x.permute(*d))((x @ wqkv).reshape(B, S, 3, H, Dh), 2, 0, 3, 1, 4)
        q, k, v = qkv[0], qkv[1], qkv[2]
        scale = Dh ** -0.5
        scores = torch.einsum("bhqd,bhkd->bhqk", q, k) * scale
        p = _softmax(scores, axis=-1)
        o = torch.einsum("bhqk,bhkd->bhqd", p, v)
        return (lambda x, *d: x.permute(*d))(o, 0, 2, 1, 3).reshape(B, S, D) @ wo

    def _B_ref(x, wqkv, w_phi, wo):
        B, S, D = x.shape
        H = 32; Dh = D // H
        qkv = (lambda x, *d: x.permute(*d))((x @ wqkv).reshape(B, S, 3, H, Dh), 2, 0, 3, 1, 4)
        q, k, v = qkv[0], qkv[1], qkv[2]
        pq = torch.einsum("bhsd,hdf->bhsf", q, w_phi)
        pk = torch.einsum("bhsd,hdf->bhsf", k, w_phi)
        phi_q = torch.concatenate([_softmax(pq, axis=-1), _softmax(-pq, axis=-1)], axis=-1)
        phi_k = torch.concatenate([_softmax(pk, axis=-1), _softmax(-pk, axis=-1)], axis=-1)
        kv = torch.einsum("bhsf,bhsd->bhfd", phi_k, v)
        z  = torch.einsum("bhsf->bhf", phi_k)
        num = torch.einsum("bhqf,bhfd->bhqd", phi_q, kv)
        den = torch.einsum("bhqf,bhf->bhq", phi_q, z)[..., None] + 1e-6
        o = num / den
        return (lambda x, *d: x.permute(*d))(o, 0, 2, 1, 3).reshape(B, S, D) @ wo

    x = A_x
    g = _sigmoid((x * gate_w).sum(-1, keepdims=True))
    a = _A_ref(x, A_wqkv, A_wo)
    b = _B_ref(x, B_wqkv, B_w_phi, B_wo)
    return g * a + (1 - g) * b
```

```python
import sys, os, subprocess, struct, ctypes, importlib.util
import numpy as np
sys.path.insert(0, "cdna_kernels")

TEMPLATE = """
.amdgcn_target "amdgcn-amd-amdhsa--gfx950"
.text
.globl mb_kernel
.p2align 8
.type mb_kernel,@function
mb_kernel:
    s_load_dwordx2 s[4:5], s[0:1], 0
    s_load_dwordx2 s[20:21], s[0:1], 8
    v_lshrrev_b32 v250, 6, v0
    s_nop 1
    v_readfirstlane_b32 s12, v250
{init}
    s_waitcnt lgkmcnt(0)
    s_mov_b32 s24, s20
    s_mov_b32 s25, s21
    s_mov_b32 s26, 0x4000000
    s_mov_b32 s27, 0x00020000
{pre}
    s_mov_b32 s10, {iters}
    s_barrier
    s_memtime s[6:7]
    s_waitcnt lgkmcnt(0)
.p2align 6
L_loop:
{body}
    s_sub_u32 s10, s10, 1
    s_cmp_lg_u32 s10, 0
    s_cbranch_scc1 L_loop
    s_waitcnt vmcnt(0) lgkmcnt(0)
    s_nop 15
    s_nop 15
    s_memtime s[8:9]
    s_waitcnt lgkmcnt(0)
    s_sub_u32 s8, s8, s6
    s_mul_i32 s13, s2, {nwaves}
    s_add_u32 s13, s13, s12
    s_lshl_b32 s13, s13, 2
    v_mov_b32 v251, s13
    v_mov_b32 v252, s8
    global_store_dword v251, v252, s[4:5]
    s_waitcnt vmcnt(0)
    s_endpgm
.section .rodata,"a"
.p2align 6
.amdhsa_kernel mb_kernel
  .amdhsa_next_free_vgpr {nvgpr}
  .amdhsa_next_free_sgpr 96
  .amdhsa_accum_offset {accum}
  .amdhsa_group_segment_fixed_size 0
  .amdhsa_kernarg_size 16
  .amdhsa_user_sgpr_count 2
  .amdhsa_user_sgpr_kernarg_segment_ptr 1
  .amdhsa_system_sgpr_workgroup_id_x 1
.end_amdhsa_kernel
.amdgpu_metadata
---
amdhsa.version: [1, 2]
amdhsa.kernels:
  - .name: mb_kernel
    .symbol: mb_kernel.kd
    .kernarg_segment_size: 16
    .kernarg_segment_align: 8
    .group_segment_fixed_size: 0
    .private_segment_fixed_size: 0
    .wavefront_size: 64
    .sgpr_count: 102
    .vgpr_count: {nvgpr}
    .max_flat_workgroup_size: 1024
    .args:
      - {{.name: kernargs, .size: 16, .offset: 0, .value_kind: by_value}}
...
.end_amdgpu_metadata
"""

def gen(b, path):
    nv = b.get("nvgpr", 128)
    init = "\n".join(f"    v_mov_b32 v{i}, {b.get('initval','0.5')}" for i in range(1, nv - 3))
    t = TEMPLATE.format(init=init, pre=b.get("pre", ""), iters=b["iters"], body=(b["body"] + "\n") * b["unroll"],
                        nwaves=b["block"] // 64, nvgpr=nv, accum=nv)
    t = t.replace("v250", f"v{nv-3}").replace("v251", f"v{nv-2}").replace("v252", f"v{nv-1}")
    open(path, "w").write(t)

def main():
    spec = importlib.util.spec_from_file_location("bf", sys.argv[1])
    bf = importlib.util.module_from_spec(spec); spec.loader.exec_module(bf)
    on_gpu = os.path.exists("/dev/kfd")
    if on_gpu:
        import cdna_launch as cl
        hip = cl._hip
    os.makedirs("mbout", exist_ok=True)
    for b in bf.BENCHES:
        s = f"mbout/{b['name']}.s"; co = s[:-2] + ".co"
        gen(b, s)
        r = subprocess.run(["clang", "-x", "assembler", "-target", "amdgcn-amd-amdhsa", "-mcpu=gfx950", s, "-o", co], capture_output=True, text=True)
        if r.returncode:
            print(b["name"], "ASM FAIL", r.stderr[:2000]); continue
        if not on_gpu:
            print(b["name"], "assembled"); continue
        k = cl.AsmKernel(co, "mb_kernel")
        nw = b["block"] // 64 * b["grid"]
        out = cl.DeviceBuffer(nw * 4)
        scratch = cl.DeviceBuffer(0x4000000)
        hip.hipMemset(ctypes.c_void_p(scratch.ptr), 0, 0x4000000)
        ka = struct.pack("<2Q", out.ptr, scratch.ptr)
        res = []
        e0 = ctypes.c_void_p(); e1 = ctypes.c_void_p()
        hip.hipEventCreate(ctypes.byref(e0)); hip.hipEventCreate(ctypes.byref(e1))
        for rep in range(4):
            hip.hipEventRecord(e0, None)
            k.launch((b["grid"], 1, 1), (b["block"], 1, 1), ka, b.get("lds", 0))
            hip.hipEventRecord(e1, None)
            hip.hipDeviceSynchronize()
            ms = ctypes.c_float()
            hip.hipEventElapsedTime(ctypes.byref(ms), e0, e1)
            o = out.to_numpy(np.uint32, (nw,))
            res.append((np.median(o), o.max(), ms.value))
        med, mx, ms = res[-1]
        per = b["iters"] * b["unroll"]
        print(f"{b['name']:40s} blk={b['block']:4d} grid={b['grid']:4d} cyc/body: med {med/per:9.2f} max {mx/per:9.2f}  wall {ms*1e3:8.1f}us  (eff clk {mx/(ms*1e3)/1e3:.2f} GHz)")
        k.unload()

main()
```

```python
NAME = "gated_mix__softmax_full_mha__linear_kernel_hedgehog__prompt"
import os
_ref = "cdna_kernels/" + NAME + ".s.ref"
HEADER = open(_ref).read().split("; Override launch geometry")[0] if os.path.exists(_ref) else ""

MB = 1 << 20
WS_Q = 0
WS_K = 2 * MB
WS_V = 4 * MB
WS_PQ = 6 * MB
WS_KV = 10 * MB
WS_G = 12 * MB
WS_O = 13 * MB
WS_T = 18 * MB
WS_END = 20 * MB
WS_SIZE = 268435456

KA_X, KA_WA, KA_WOA, KA_BX, KA_WB, KA_PHI, KA_WOB, KA_GATE, KA_OUT, KA_DBG, KA_WS = [8 * i for i in range(11)]

import struct
def f2u(x):
    return struct.unpack("<I", struct.pack("<f", x))[0]
LOG2E = 1.4426950408889634

class Opt:
    STAMP = False
    FUSED = False
    PLAIN = False

WS_F = 17 * MB
F1A, F1B, F2 = WS_F, WS_F + 1024, WS_F + 2048

class Asm:
    def __init__(self):
        self.lines = []
        self.tails = []
        self.ws = None
    def __call__(self, s):
        for ln in s.strip("\n").split("\n"):
            ln = ln.strip()
            if Opt.FUSED and self.ws and ln.startswith("buffer_store" if Opt.PLAIN else "buffer_") and self.ws in ln and " sc1" not in ln:
                ln = ln[:-4] + " sc1 lds" if ln.endswith(" lds") else ln + " sc1"
            self.lines.append("    " + ln)
    def label(self, l):
        self.lines.append(l + ":")
    def raw(self, s):
        self.lines.append(s)
    def c(self, s):
        self.lines.append("    ; " + s)
    def text(self):
        return "\n".join(self.lines) + "\n"

def vr(a, n=1):
    return f"v{a}" if n == 1 else f"v[{a}:{a+n-1}]"
def sr(a, n=1):
    return f"s{a}" if n == 1 else f"s[{a}:{a+n-1}]"

def srd(A, d, base, nbytes):
    A(f"s_mov_b32 s{d}, s{base}")
    A(f"s_mov_b32 s{d+1}, s{base+1}")
    A(f"s_mov_b32 s{d+2}, {nbytes:#x}")
    A(f"s_mov_b32 s{d+3}, 0x00020000")

def kernel_begin(A, label):
    A.raw(f".globl {label}")
    A.raw(".p2align 8")
    A.raw(f".type {label},@function")
    A.label(label)

def kernel_desc(label, nvgpr, nsgpr=96):
    if Opt.STAMP:
        nvgpr = 256
    acc = (nvgpr + 3) // 4 * 4
    return f""".p2align 6
.amdhsa_kernel {label}
  .amdhsa_next_free_vgpr {nvgpr}
  .amdhsa_next_free_sgpr {nsgpr}
  .amdhsa_accum_offset {acc}
  .amdhsa_group_segment_fixed_size 0
  .amdhsa_kernarg_size 88
  .amdhsa_user_sgpr_count 2
  .amdhsa_user_sgpr_kernarg_segment_ptr 1
  .amdhsa_system_sgpr_workgroup_id_x 1
.end_amdhsa_kernel
"""


def stamp(A, slot):
    if Opt.STAMP:
        if slot == 0:
            A("v_mov_b32 v255, 0")
            A("s_memrealtime s[80:81]")
            A("s_waitcnt lgkmcnt(0)")
            A("v_writelane_b32 v255, s80, 62")
        A("s_memtime s[80:81]")
        if isinstance(slot, str):
            A(f"s_mov_b32 m0, {slot}")
            slot = "m0"
        A("s_waitcnt lgkmcnt(0)")
        A(f"v_writelane_b32 v255, s80, {slot}")

def stamp_end(A, kidx, rWS, sWave):
    if Opt.STAMP:
        stamp(A, 60)
        A("s_waitcnt vmcnt(0) lgkmcnt(0)")
        stamp(A, 61)
        A("s_memrealtime s[80:81]")
        A(f"s_add_u32 s82, s2, {kidx*256}")
        A(f"s_lshl_b32 s82, s82, 3")
        A(f"s_add_u32 s82, s82, s{sWave}")
        A(f"s_lshl_b32 s82, s82, 8")
        A(f"s_add_u32 s82, s82, {WS_T:#x}")
        A("s_waitcnt lgkmcnt(0)")
        A("v_writelane_b32 v255, s80, 63")
        A("v_mbcnt_lo_u32_b32 v254, -1, 0")
        A("v_mbcnt_hi_u32_b32 v254, -1, v254")
        A("v_lshlrev_b32 v254, 2, v254")
        A(f"buffer_store_dword v255, v254, s[{rWS}:{rWS+3}], s82 offen")
    if not (Opt.FUSED and kidx < 2):
        A("s_endpgm")
```

```python
from fy_common import *
from k1 import feature_map

class P1Opt:
    ROT = 1
    PFS = 1
    PFS_AT = 0
    PUBSTEP = 8
    ATOM = 6
    LDSTAMP = True
    NOPQ = 0

def decode_rest(A):
    A(f"s_lshl_b32 s{sT}, s{sCT}, 4")
    A(f"s_add_u32 s{sT}, s{sT}, s{sRB}")
    A(f"s_and_b32 s{sT2}, s{sWave}, 3")
    A(f"s_lshl_b32 s{sT2}, s{sT2}, 6")
    A(f"s_lshl_b32 s{sF1}, s{sT}, 8")
    A(f"s_add_u32 s{sF1}, s{sF1}, s{sT2}")
    A(f"s_add_u32 s{sF1}, s{sF1}, {F1:#x}")
    A(f"s_lshr_b32 s{sT2}, s{sWave}, 2")
    A(f"s_lshl_b32 s{sT2}, s{sT2}, 16")
    A(f"s_add_u32 s{sF1L}, s{sF1}, s{sT2}")
    A(f"s_add_u32 s{sF1L}, s{sF1L}, 65536")
    A(f"s_and_b32 s{sT}, s2, 7")
    A(f"s_lshl_b32 s{sT}, s{sT}, 2")
    A(f"s_bfe_u32 s{sT2}, s2, 0x20003")
    A(f"s_add_u32 s{sHead}, s{sT}, s{sT2}")
    A(f"s_lshr_b32 s{sQB}, s2, 5")
    A(f"s_lshl_b32 s{sT}, s{sQB}, 19")
    A(f"s_lshl_b32 s{sT2}, s{sHead}, 10")
    A(f"s_add_u32 s{sT}, s{sT}, s{sT2}")
    A(f"s_add_u32 s{sOo}, s{sT}, {WS_O:#x}")
    A(f"s_lshl_b32 s{sT}, s{sQB}, 3")
    A(f"s_add_u32 s{sT}, s{sT}, s{sWave}")
    A(f"s_lshl_b32 s{sT}, s{sT}, 5")
    A(f"s_add_u32 s{sT}, s{sT}, s{sHead}")
    A(f"s_lshl_b32 s{sT}, s{sT}, 6")
    A(f"s_add_u32 s{sF2}, s{sT}, {F2:#x}")
    A(f"s_mov_b32 s{sC}, {f2u(LOG2E):#x}")

def prologue(A, L):
    A("s_cmp_ge_u32 s2, 256")
    A(f"s_cbranch_scc1 {L}_exit")
    A(f"s_load_dwordx16 s[4:19], s[0:1], 0")
    A(f"s_load_dwordx4 s[20:23], s[0:1], 64")
    A(f"s_load_dwordx2 s[24:25], s[0:1], 80")
    A(f"v_lshrrev_b32 v1, 6, v0")
    A(f"v_and_b32 v{vL}, 63, v0")
    A(f"v_lshlrev_b32 v{vL16}, 4, v{vL}")
    A(f"v_readfirstlane_b32 s{sWave}, v1")
    A(f"s_and_b32 s{sRB}, s2, 1")
    A(f"s_lshl_b32 s{sRB}, s{sRB}, 3")
    A(f"s_bfe_u32 s{sSt}, s2, 0x30003")
    A(f"s_add_u32 s{sRB}, s{sRB}, s{sSt}")
    A(f"s_lshr_b32 s{sT2}, s2, 6")
    A(f"s_bfe_u32 s{sT}, s2, 0x20001")
    A(f"s_lshl_b32 s{sCT}, s{sT}, 2")
    A(f"s_add_u32 s{sCT}, s{sCT}, s{sT2}")
    if P1Opt.ROT == 1:
        A(f"s_lshl_b32 s{sT2}, s{sT2}, 1")
        A(f"s_add_u32 s{sSt}, s{sSt}, s{sT2}")
        A(f"s_and_b32 s{sSt}, s{sSt}, 7")
    A(f"s_cmp_lt_u32 s{sWave}, 4")
    A(f"s_cbranch_scc1 {L}_comp")

def wphi_reads(A, vA, vT, WPF):
    A(f"v_lshrrev_b32 v{vT}, 5, v{vL}")
    A(f"v_bfe_u32 v{vA}, v{vL}, 2, 2")
    A(f"v_lshl_add_u32 v{vA}, v{vT}, 2, v{vA}")
    A(f"v_lshlrev_b32 v{vA}, 5, v{vA}")
    A(f"v_and_b32 v{vT}, 3, v{vL}")
    A(f"v_lshl_add_u32 v{vA}, v{vT}, 3, v{vA}")
    return [f"ds_read_b64_tr_b16 v[{WPF+4*i+2*u}:{WPF+4*i+2*u+1}], v{vA} offset:{L_WPHI + i*512 + u*256}"
            for i in range(2) for u in range(2)]

def loader(A, L):
    sJ, sXo, sMX, sMW, sA, sB, sWc, sGo = S0, S0 + 1, S0 + 2, S0 + 3, S0 + 4, S0 + 5, S0 + 6, S0 + 7
    sPF, sWst, sSpin, sFp = 84, 86, 87, 88
    vXs, vWs, vT = 2, 6, 8
    vGX, vGW, vGA = 16, 48, 52
    vD, vDa, vF, vFa = 60, 61, 62, 63
    D2, E, PH, KQ, WPF, WOF = [64, 80], 96, [112, 120], 128, 136, 144
    lst = lambda s: stamp(A, s) if P1Opt.LDSTAMP else None
    A(f"s_sub_u32 s{sJ}, s{sWave}, 4")
    A(f"v_lshrrev_b32 v{vT}, 3, v{vL}")
    A(f"s_lshl_b32 s{sT}, s{sJ}, 5")
    A(f"v_add_u32 v{vT+1}, s{sT}, v{vT}")
    A(f"v_lshlrev_b32 v{vT+1}, 10, v{vT+1}")
    A(f"v_lshrrev_b32 v{vT+2}, 4, v{vL}")
    A(f"v_and_b32 v{vT+3}, 7, v{vL}")
    A(f"v_xor_b32 v{vT+4}, v{vT+3}, v{vT+2}")
    A(f"v_lshl_add_u32 v{vXs}, v{vT+4}, 4, v{vT+1}")
    A(f"v_xor_b32 v{vT+4}, 4, v{vT+4}")
    A(f"v_lshl_add_u32 v{vXs+1}, v{vT+4}, 4, v{vT+1}")
    A(f"v_add_u32 v{vXs+1}, {7168}, v{vXs+1}")
    A(f"v_add_u32 v{vXs+2}, {2*7168}, v{vXs}")
    A(f"v_add_u32 v{vXs+3}, {2*7168}, v{vXs+1}")
    A(f"s_lshl_b32 s{sT}, s{sJ}, 4")
    A(f"v_lshrrev_b32 v{vT}, 2, v{vL}")
    A(f"v_add_u32 v{vT+1}, s{sT}, v{vT}")
    A(f"v_mul_u32_u24 v{vT+1}, 3072, v{vT+1}")
    A(f"v_and_b32 v{vT+3}, 3, v{vL}")
    A(f"v_lshl_add_u32 v{vWs}, v{vT+3}, 4, v{vT+1}")
    A(f"s_lshl_b32 s{sWc}, s{sCT}, 6")
    A(f"s_lshl_b32 s{sXo}, s{sRB}, 17")
    A(f"s_lshl_b32 s{sMX}, s{sJ}, 12")
    A(f"s_mul_i32 s{sMW}, s{sJ}, 3072")
    A(f"s_mov_b32 s{rX+2}, {2*MB:#x}")
    A(f"s_mov_b32 s{rX+3}, 0x00020000")
    for r in (rW0, rW1):
        A(f"s_mov_b32 s{r+2}, {512*3072:#x}")
        A(f"s_mov_b32 s{r+3}, 0x00020000")
    A("s_waitcnt lgkmcnt(0)")
    A(f"s_mov_b64 s[{rX}:{rX+1}], s[{pX}:{pX+1}]")
    A(f"s_mov_b64 s[{rW0}:{rW0+1}], s[{pWA}:{pWA+1}]")
    A(f"s_mov_b64 s[{rW1}:{rW1+1}], s[{pWB}:{pWB+1}]")
    stamp(A, 0)
    VM = Track(A, "vmcnt", 63)

    def wpart(r, ldsoff, tag):
        A(f"s_mul_i32 s{sB}, s{sSt}, {64*3072}")
        A(f"s_add_u32 m0, s{sMW}, {ldsoff}")
        A(f"s_add_u32 s{sB}, s{sB}, s{sWc}")
        for m in range(3):
            VM(f"buffer_load_dwordx4 v{vWs}, {R(r)}, s{sB} offen offset:{m*1024} lds", tag)
        A(f"s_add_u32 s{sSt}, s{sSt}, 1")
        A(f"s_and_b32 s{sSt}, s{sSt}, 7")
    def unit(u):
        if u < 8:
            A(f"s_lshl_b32 s{sA}, s{sSt}, 7")
            A(f"s_add_u32 m0, s{sMX}, {A_SLOT[u]}")
            A(f"s_add_u32 s{sA}, s{sA}, s{sXo}")
            for a in range(4):
                VM(f"buffer_load_dwordx4 v{vXs+a}, {R(rX)}, s{sA} offen offset:{a*1024} lds", u)
            wpart(rW0, A_SLOT[u] + 16384, u)
        else:
            for h in range(2):
                wpart(rW1, B_SLOT[u - 8] + h * 12288, u)
    unit(0); lst(1)
    unit(1); lst(2)
    decode_rest(A)
    srd(A, rWS, pWS, FZ_END)
    if P1Opt.PFS:
        A(f"s_and_b32 s{sT}, s{sRB}, 7")
        A(f"s_lshl_b32 s{sT}, s{sT}, 1")
        A(f"s_and_b32 s{sT2}, s{sCT}, 1")
        A(f"s_add_u32 s{sT}, s{sT}, s{sT2}")
        A(f"s_lshl_b32 s{sT}, s{sT}, 2")
        A(f"s_add_u32 s{sT}, s{sT}, s{sJ}")
        A(f"s_mul_i32 s{sT}, s{sT}, {8*3072}")
        A(f"s_lshr_b32 s{sT2}, s{sCT}, 1")
        A(f"s_lshl_b32 s{sT2}, s{sT2}, 7")
        A(f"s_add_u32 s{sT}, s{sT}, s{sT2}")
        A(f"s_add_u32 s{sPF}, s{pWB}, s{sT}")
        A(f"s_addc_u32 s{sPF+1}, s{pWB+1}, 0")
    pfl = [n * 1024 + h * 64 for n in range(24) for h in range(P1Opt.PFS)]
    for i in range(12):
        VM.wait(i)
        quiet = P1Opt.PFS and P1Opt.PFS_AT < i <= P1Opt.PFS_AT + 5
        if not quiet: lst(16 + i)
        A("s_barrier")
        if not quiet: lst(28 + i)
        if i + 2 < 12:
            unit(i + 2)
        if i >= P1Opt.PFS_AT:
            for off in pfl[:12]:
                A(f"s_load_dword s99, s[{sPF}:{sPF+1}], {off:#x}")
            pfl = pfl[12:]
        if i == 9:
            srd(A, rM, pPHI, 32 * 512)
            A(f"s_mov_b32 m0, {L_WPHI}")
            A(f"s_lshl_b32 s{sA}, s{sCT}, 10")
            VM(f"buffer_load_dwordx4 v{vL16}, {R(rM)}, s{sA} offen lds", "misc")
            A(f"s_and_b32 s{sT}, s{sJ}, 1")
            A(f"s_cmp_eq_u32 s{sT}, 0")
            A(f"s_cselect_b64 s[{rM2}:{rM2+1}], s[{pWOA}:{pWOA+1}], s[{pWOB}:{pWOB+1}]")
            A(f"s_mov_b32 s{rM2+2}, {512*1024:#x}")
            A(f"s_mov_b32 s{rM2+3}, 0x00020000")
            A(f"v_lshrrev_b32 v{vT}, 2, v{vL}")
            A(f"v_lshlrev_b32 v{vT}, 10, v{vT}")
            A(f"v_and_b32 v{vT+1}, 3, v{vL}")
            A(f"v_lshl_add_u32 v{vT}, v{vT+1}, 4, v{vT}")
            A(f"s_lshr_b32 s{sT2}, s{sJ}, 1")
            A(f"s_lshl_b32 s{sB}, s{sRB}, 1")
            A(f"s_add_u32 s{sB}, s{sB}, s{sT2}")
            A(f"s_lshl_b32 s{sA}, s{sB}, 14")
            A(f"s_add_u32 s{sA}, s{sA}, s{sWc}")
            A(f"s_lshl_b32 s{sT2}, s{sJ}, 10")
            A(f"s_add_u32 m0, s{sT2}, {L_WOS}")
            A(f"s_lshl_b32 s{sT3}, s{sCT}, 1")
            A(f"s_add_u32 s{sT3}, s{sT3}, s{sT}")
            A(f"s_lshl_b32 s{sT3}, s{sT3}, 5")
            A(f"s_add_u32 s{sT3}, s{sT3}, s{sB}")
            A(f"s_lshl_b32 s{sT3}, s{sT3}, 10")
            A(f"s_add_u32 s{sWst}, s{sT3}, {WS_WO:#x}")
            VM(f"buffer_load_dwordx4 v{vT}, {R(rM2)}, s{sA} offen lds", "misc")
            A(f"v_lshrrev_b32 v{vT+3}, 5, v{vL}")
            A(f"v_bfe_u32 v{vT+4}, v{vL}, 2, 2")
            A(f"v_lshl_add_u32 v{vT+3}, v{vT+3}, 2, v{vT+4}")
            A(f"v_lshlrev_b32 v{vT+3}, 6, v{vT+3}")
            A(f"v_bfe_u32 v{vT+4}, v{vL}, 4, 1")
            A(f"v_lshl_add_u32 v{vT+3}, v{vT+4}, 5, v{vT+3}")
            A(f"v_and_b32 v{vT+4}, 3, v{vL}")
            A(f"v_lshl_add_u32 v{vT+3}, v{vT+4}, 3, v{vT+3}")
            A(f"v_add_u32 v{vT+3}, s{sT2}, v{vT+3}")
            srd(A, rM, pGATE, 1024)
            A(f"s_and_b32 s{sT}, s{sCT}, 3")
            A(f"s_lshl_b32 s{sT}, s{sT}, 2")
            A(f"s_add_u32 s{sT}, s{sT}, s{sJ}")
            A(f"s_lshl_b32 s{sA}, s{sT}, 13")
            A(f"s_add_u32 s{sA}, s{sA}, s{sXo}")
            A(f"s_add_u32 s{sB}, s{sA}, 4096")
            VM(f"buffer_load_dwordx4 v[{vGW}:{vGW+3}], v{vL16}, {R(rM)}, 0 offen", "misc")
            for r in range(8):
                VM(f"buffer_load_dwordx4 v[{vGX+4*r}:{vGX+4*r+3}], v{vL16}, {R(rX)}, s{sB if r >= 4 else sA} offen offset:{(r%4)*1024}", "misc")
            A(f"s_lshr_b32 s{sGo}, s{sA}, 8")
            A(f"s_lshr_b32 s{sT}, s{sCT}, 2")
            A(f"s_lshl_b32 s{sT}, s{sT}, 13")
            A(f"s_add_u32 s{sGo}, s{sGo}, s{sT}")
            A(f"s_add_u32 s{sGo}, s{sGo}, {WS_G:#x}")
        if i == 10:
            srd(A, rM, pDBG, 256)
            A(f"v_and_b32 v{vDa}, 3, v{vL}")
            A(f"v_lshlrev_b32 v{vDa}, 6, v{vDa}")
            VM(f"buffer_load_dword v{vD}, v{vDa}, {R(rM)}, 0 offen sc1", "dbg")
            A(f"v_lshrrev_b32 v{vFa}, 2, v{vL}")
            A(f"v_and_b32 v{vF}, 3, v{vL}")
            A(f"v_lshl_add_u32 v{vFa}, v{vFa}, 4, v{vF}")
            A(f"s_lshl_b32 s{sT}, s{sJ}, 2")
            A(f"v_add_u32 v{vFa}, s{sT}, v{vFa}")
            A(f"s_lshl_b32 s{sT}, s{sQB}, 2")
            A(f"s_add_u32 s{sT}, s{sT}, s{sJ}")
            A(f"s_lshl_b32 s{sT}, s{sT}, 1")
            A(f"v_and_b32 v{vF}, 1, v{vL}")
            A(f"v_add_u32 v{vF}, s{sT}, v{vF}")
            A(f"v_cmp_gt_u32 vcc, 16, v{vL}")
            A(f"s_lshr_b32 s{sFp}, s{sHead}, 1")
            A(f"v_cndmask_b32 v{vFa}, v{vF}, v{vFa}, vcc")
            A(f"v_lshlrev_b32 v{vFa}, 6, v{vFa}")
            A(f"s_lshl_b32 s{sFp}, s{sFp}, 12")
            A(f"s_add_u32 s{sFp}, s{sFp}, {F1:#x}")
            A(f"s_mov_b32 s{sSpin}, {SPIN:#x}")
    A("s_waitcnt vmcnt(0)")
    lst(3)
    A(f"ds_read_b64_tr_b16 v[{WOF}:{WOF+1}], v{vT+3} offset:{L_WOS}")
    A(f"ds_read_b64_tr_b16 v[{WOF+2}:{WOF+3}], v{vT+3} offset:{L_WOS+512}")
    A(f"v_cmp_ne_u32 vcc, 64, v{vD}")
    A(f"s_cbranch_vccnz {L}_dspin")
    A.label(f"{L}_dok")
    A.tails.append([f"{L}_dspin:",
                    f"    buffer_load_dword v{vD}, v{vDa}, {R(rM)}, 0 offen sc1",
                    f"    s_sub_u32 s{sSpin}, s{sSpin}, 1",
                    f"    s_cbranch_scc1 {L}_dok",
                    "    s_waitcnt vmcnt(0)",
                    f"    v_cmp_ne_u32 vcc, 64, v{vD}",
                    f"    s_cbranch_vccnz {L}_dspin",
                    f"    s_branch {L}_dok"])
    g = [vGA + r for r in range(8)]
    for i in range(4):
        for r in range(8):
            A(f"v_dot2_f32_bf16 v{g[r]}, v{vGX+4*r+i}, v{vGW+i}, {'0' if i == 0 else 'v%d' % g[r]}")
    A("s_nop 2")
    for r in range(0, 8, 2):
        A(f"v_permlane32_swap_b32 v{g[r]}, v{g[r+1]}")
    for r in range(0, 8, 2):
        A(f"v_add_f32 v{g[r]}, v{g[r]}, v{g[r+1]}")
    A("s_nop 1")
    A(f"v_permlane16_swap_b32 v{g[0]}, v{g[2]}")
    A(f"v_permlane16_swap_b32 v{g[4]}, v{g[6]}")
    A(f"v_and_b32 v{g[1]}, 8, v{vL}")
    A(f"v_add_f32 v{g[0]}, v{g[0]}, v{g[2]}")
    A(f"v_add_f32 v{g[4]}, v{g[4]}, v{g[6]}")
    A(f"v_cmp_eq_u32 vcc, 0, v{g[1]}")
    for rr in (8, 4, 2, 1):
        A(f"v_add_f32_dpp v{g[0]}, v{g[0]}, v{g[0]} row_ror:{rr} row_mask:0xf bank_mask:0xf")
        A(f"v_add_f32_dpp v{g[4]}, v{g[4]}, v{g[4]} row_ror:{rr} row_mask:0xf bank_mask:0xf")
        A("s_nop 0")
    g0, g1 = g[0], g[1]
    A(f"v_cndmask_b32 v{g0}, v{g[4]}, v{g0}, vcc")
    A(f"v_mul_f32 v{g0}, s{sC}, v{g0}")
    A(f"v_exp_f32_e64 v{g0}, -v{g0}")
    A(f"v_lshlrev_b32 v{g1}, 1, v{g1}")
    A(f"v_add_f32 v{g0}, 1.0, v{g0}")
    A(f"v_rcp_f32 v{g0}, v{g0}")
    A(f"v_bfe_u32 v{g[2]}, v{vL}, 4, 1")
    A(f"v_lshl_add_u32 v{g1}, v{g[2]}, 3, v{g1}")
    A(f"v_lshrrev_b32 v{g[2]}, 5, v{vL}")
    A(f"v_lshl_add_u32 v{g1}, v{g[2]}, 2, v{g1}")
    for r in wphi_reads(A, vT, vT + 1, WPF):
        A(r)
    A(f"s_and_b32 s{sT}, s{sJ}, 1")
    A(f"s_lshl_b32 s{sT}, s{sT}, 11")
    A(f"s_lshr_b32 s{sT2}, s{sJ}, 1")
    A(f"s_mul_i32 s{sT2}, s{sT2}, {SLOT}")
    A(f"s_add_u32 s{sT}, s{sT}, s{sT2}")
    A(f"s_add_u32 s{sT}, s{sT}, {L_QX}")
    A(f"v_add_u32 v{vT+2}, s{sT}, v{vL16}")
    A(f"s_lshl_b32 s{sA}, s{sHead}, 16")
    A(f"s_lshl_b32 s{sT}, s{sQB}, 13")
    A(f"s_add_u32 s{sA}, s{sA}, s{sT}")
    A(f"s_lshl_b32 s{sT}, s{sJ}, 11")
    A(f"s_add_u32 s{sA}, s{sA}, s{sT}")
    A(f"s_mul_i32 s{sMX}, s{sJ}, {TS}")
    A(f"s_add_u32 s{sMX}, s{sMX}, {L_QT}")
    A(f"s_lshl_b32 s{sB}, s{sHead}, 17")
    A(f"s_lshl_b32 s{sT}, s{sJ}, 13")
    A(f"s_add_u32 s{sB}, s{sB}, s{sT}")
    A(f"s_add_u32 s{sB}, s{sB}, {WS_K:#x}")
    A(f"s_mul_i32 s{sMW}, s{sJ}, {4*TS}")
    A(f"buffer_load_dword v{vF}, v{vFa}, {RWS}, s{sFp} offen sc1")
    A("s_waitcnt lgkmcnt(0)")
    lst(4)
    A("s_barrier")
    lst(5)
    A(f"ds_read_b128 v[{KQ}:{KQ+3}], v{vT+2}")
    A(f"ds_read_b128 v[{KQ+4}:{KQ+7}], v{vT+2} offset:1024")
    for i in range(2):
        A(f"s_waitcnt lgkmcnt({1-i})")
        A(f"v_mfma_f32_32x32x16_bf16 v[{D2[i]}:{D2[i]+15}], v[{WPF+4*i}:{WPF+4*i+3}], v[{KQ+4*i}:{KQ+4*i+3}], 0")
    A(f"s_mov_b32 m0, s{sMX}")
    A("s_waitcnt vmcnt(0)")
    A(f"v_cmp_ne_u32 vcc, 1, v{vF}")
    A(f"s_cbranch_vccnz {L}_fspin")
    A.label(f"{L}_fok")
    A.tails.append([f"{L}_fspin:",
                    f"    buffer_load_dword v{vF}, v{vFa}, {RWS}, s{sFp} offen sc1",
                    f"    s_sub_u32 s{sSpin}, s{sSpin}, 1",
                    f"    s_cbranch_scc1 {L}_fok",
                    "    s_waitcnt vmcnt(0)",
                    f"    v_cmp_ne_u32 vcc, 1, v{vF}",
                    f"    s_cbranch_vccnz {L}_fspin",
                    f"    s_branch {L}_fok"])
    lst(6)
    A(f"buffer_load_dwordx4 v{vL16}, {RWS}, s{sA} offen lds")
    A(f"buffer_load_dwordx4 v{vL16}, {RWS}, s{sA} offen offset:1024 lds")
    for t in range(4):
        A(f"s_add_u32 m0, s{sMW}, {KVBASE + t*TS}")
        if t:
            A(f"s_add_u32 s{sB}, s{sB}, 2048")
        else:
            A("s_nop 0")
        A(f"buffer_load_dwordx4 v{vL16}, {RWS}, s{sB} offen lds")
        A(f"buffer_load_dwordx4 v{vL16}, {RWS}, s{sB} offen offset:1024 lds")
    if not P1Opt.NOPQ:
        A(f"buffer_store_dwordx4 v[{WOF}:{WOF+3}], v{vL16}, {RWS}, s{sWst} offen")
        A(f"buffer_store_dword v{g0}, v{g1}, {RWS}, s{sGo} offen")
    lst(7)
    A(f"s_lshl_b32 s{sT}, s{sCT}, 18")
    A(f"s_lshl_b32 s{sT2}, s{sRB}, 2")
    A(f"s_add_u32 s{sT2}, s{sT2}, s{sJ}")
    A(f"s_lshl_b32 s{sT2}, s{sT2}, 11")
    A(f"s_add_u32 s{sT}, s{sT}, s{sT2}")
    A(f"s_add_u32 s{sT}, s{sT}, {WS_PQ:#x}")
    A(f"s_add_u32 s{sT2}, s{sT}, 131072")
    for i in range(2):
        feature_map(A, D2[i], vT, vT + 1, E, PH[i], sC)
        for f in range(0 if P1Opt.NOPQ else 2):
            A(f"buffer_store_dwordx4 v[{PH[i]+4*f}:{PH[i]+4*f+3}], v{vL16}, {RWS}, s{sT2 if i else sT} offen offset:{f*1024}")
    lst(8)

def compute(A, L):
    sQo, sKo, sSc = S0, S0 + 2, 84
    XR, ACC, WF = 0, [128, 144, 160], [176, 188, 200]
    vXa, vWa, vKp, vVo, vT = 212, 216, 217, 218, 220
    PK = [230, 238]
    vOne = 246
    A.label(f"{L}_comp")
    decode_rest(A)
    A(f"s_mov_b32 s{sSc}, {f2u(0.25*LOG2E):#x}")
    A(f"s_mov_b32 s{sSc+1}, s{sSc}")
    A(f"v_and_b32 v{vT}, 31, v{vL}")
    A(f"v_lshrrev_b32 v{vT+1}, 5, v{vL}")
    A(f"v_bfe_u32 v{vT+2}, v{vL}, 1, 3")
    A(f"v_xor_b32 v{vT+2}, v{vT+2}, v{vT+1}")
    A(f"s_lshl_b32 s{sT}, s{sWave}, 12")
    A(f"s_add_u32 s{sT}, s{sT}, {A_SLOT[0]}")
    A(f"v_lshl_add_u32 v{vT+3}, v{vT}, 7, s{sT}")
    for kk in range(4):
        A(f"v_xor_b32 v{vT+4}, {2*kk}, v{vT+2}")
        A(f"v_lshl_add_u32 v{vXa+kk}, v{vT+4}, 4, v{vT+3}")
    A(f"v_bfe_u32 v{vT+2}, v{vL}, 2, 2")
    A(f"v_lshl_add_u32 v{vT+2}, v{vT+1}, 3, v{vT+2}")
    A(f"v_lshlrev_b32 v{vT+2}, 6, v{vT+2}")
    A(f"v_bfe_u32 v{vT+3}, v{vL}, 4, 1")
    A(f"v_lshl_add_u32 v{vT+2}, v{vT+3}, 5, v{vT+2}")
    A(f"v_and_b32 v{vT+4}, 3, v{vL}")
    A(f"v_lshl_add_u32 v{vT+2}, v{vT+4}, 3, v{vT+2}")
    A(f"v_add_u32 v{vWa}, {A_SLOT[0] + 16384}, v{vT+2}")
    A(f"v_and_b32 v{vKp}, 0x33, v{vL}")
    A(f"v_bfe_u32 v{vT+2}, v{vL}, 2, 1")
    A(f"v_lshl_or_b32 v{vKp}, v{vT+2}, 3, v{vKp}")
    A(f"v_bfe_u32 v{vT+2}, v{vL}, 3, 1")
    A(f"v_lshl_or_b32 v{vKp}, v{vT+2}, 2, v{vKp}")
    A(f"v_lshlrev_b32 v{vKp}, 4, v{vKp}")
    A(f"v_and_b32 v{vVo}, 15, v{vL}")
    A(f"v_lshlrev_b32 v{vVo}, 4, v{vVo}")
    A(f"v_lshl_add_u32 v{vVo}, v{vT+1}, 8, v{vVo}")
    A(f"v_lshl_add_u32 v{vVo}, v{vT+3}, 17, v{vVo}")
    A(f"s_lshl_b32 s{sT}, s{sCT}, 17")
    A(f"s_lshl_b32 s{sT2}, s{sRB}, 2")
    A(f"s_add_u32 s{sT2}, s{sT2}, s{sWave}")
    A(f"s_lshl_b32 s{sT2}, s{sT2}, 10")
    A(f"s_add_u32 s{sQo}, s{sT}, s{sT2}")
    A(f"s_add_u32 s{sQo+1}, s{sQo}, 65536")
    A(f"s_lshl_b32 s{sKo}, s{sQo}, 1")
    A(f"s_add_u32 s{sKo}, s{sKo}, {WS_K:#x}")
    A(f"s_add_u32 s{sKo+1}, s{sKo}, 131072")
    A(f"v_mov_b32 v{vOne}, 1")
    A(f"v_and_b32 v{vT}, 3, v{vL}")
    A(f"v_lshlrev_b32 v{vT}, 6, v{vT}")
    A(f"v_lshrrev_b32 v{vT+2}, 2, v{vL}")
    A(f"v_lshl_add_u32 v{vT}, v{vT+2}, 16, v{vT}")
    A(f"v_add_u32 v{vT}, s{sF1}, v{vT}")
    A(f"s_sub_u32 s{sT}, s{sF2}, {12*2048}")
    A(f"v_lshlrev_b32 v{vT+3}, 11, v{vL}")
    A(f"v_cmp_gt_u32 vcc, 12, v{vL}")
    A(f"v_add_u32 v{vT+3}, s{sT}, v{vT+3}")
    A(f"v_mov_b32 v{vT+1}, 0")
    A(f"v_cndmask_b32 v{vT}, v{vT+3}, v{vT}, vcc")
    A("s_waitcnt lgkmcnt(0)")
    stamp(A, 0)
    srd(A, rWS, pWS, FZ_END)
    srd(A, rM, pDBG, 256)
    A(f"s_cmp_lg_u32 s{sWave}, 0")
    A(f"s_cbranch_scc1 {L}_norst")
    A("s_mov_b64 exec, 0xfffff")
    A(f"buffer_store_dword v{vT+1}, v{vT}, {RWS}, 0 offen")
    A("s_mov_b64 exec, -1")
    A.label(f"{L}_norst")
    A(f"s_and_b32 s{sT3}, s2, 3")
    A(f"s_lshl_b32 s{sT3}, s{sT3}, 6")

    LD = Track(A, "lgkmcnt", 15)
    wbase = [A_SLOT[0] + 16384]
    xbase = [A_SLOT[0]] * 4
    def reads(n):
        out = []
        if n >= 64:
            return out
        kk = n % 4
        if n < 32:
            u = n // 4
            if xbase[kk] != A_SLOT[u]:
                out.append((f"v_add_u32 v{vXa+kk}, {(A_SLOT[u] - xbase[kk]) & 0xffffffff:#x}, v{vXa+kk}", None))
                xbase[kk] = A_SLOT[u]
            wb, wo = A_SLOT[u] + 16384, kk * 3072
        else:
            p = (n - 32) // 8
            wb, wo = B_SLOT[p], ((n - 32) % 8) * 3072
        if wbase[0] != wb:
            out.append((f"v_add_u32 v{vWa}, {(wb - wbase[0]) & 0xffffffff:#x}, v{vWa}", None))
            wbase[0] = wb
        if n < 32:
            out.append((f"ds_read_b128 v[{XR+4*n}:{XR+4*n+3}], v{vXa+kk}", (n, 0)))
        w = WF[n % 3]
        for m in range(3):
            for u2 in range(2):
                out.append((f"ds_read_b64_tr_b16 v[{w+4*m+2*u2}:{w+4*m+2*u2+1}], v{vWa} offset:{wo + m*1024 + u2*256}", (n, m)))
        return out
    def emit(lst):
        for ins, tag in lst:
            if tag is None: A(ins)
            else: LD(ins, tag)
    def mf(n, m):
        x = f"v[{XR+4*(n%32)}:{XR+4*(n%32)+3}]"; w = f"v[{WF[n%3]+4*m}:{WF[n%3]+4*m+3}]"
        acc = f"v[{ACC[m]}:{ACC[m]+15}]"
        c = "0" if n % 32 == 0 else acc
        LD.wait((n, m))
        A(f"v_mfma_f32_32x32x16_bf16 {acc}, {w}, {x}, {c}" if m < 2 else f"v_mfma_f32_32x32x16_bf16 {acc}, {x}, {w}, {c}")
    def epiA(m):
        a, p = ACC[m], PK[m & 1]
        if m == 0:
            for i in range(8):
                A(f"v_pk_mul_f32 v[{a+2*i}:{a+2*i+1}], v[{a+2*i}:{a+2*i+1}], s[{sSc}:{sSc+1}]")
        for i in range(8):
            A(f"v_cvt_pk_bf16_f32 v{p+i}, v{a+2*i}, v{a+2*i+1}")
        for h in range(2):
            d = f"v[{p+4*h}:{p+4*h+3}]"
            if m == 0:
                A(f"buffer_store_dwordx4 {d}, v{vL16}, {RWS}, s{sQo+h} offen")
            elif m == 1:
                A(f"buffer_store_dwordx4 {d}, v{vKp}, {RWS}, s{sKo+h} offen")
            else:
                A(f"buffer_store_dwordx4 {d}, v{vVo}, {RWS}, s{sKo} offen offset:{1024 + h*512}")

    first_step = {4 * u: u for u in range(8)}
    first_step.update({32 + 8 * p: 8 + p for p in range(4)})
    stamp(A, 1)
    A("s_barrier")
    stamp(A, 2)
    emit(reads(0)); emit(reads(1))
    for n in range(64):
        if n + 2 in first_step:
            A("s_barrier")
        rl = reads(n + 2)
        k = len(rl) - 4
        parts = [rl[:k], rl[k:k + 2], rl[k + 2:]] if rl else [[], [], []]
        if n == 32:
            stamp(A, 3)
            A("s_nop 5")
        order = range(3) if n != 32 else (1, 2, 0)
        for idx, m in enumerate(order):
            if n == 32:
                epiA(m)
            mf(n, m)
            emit(parts[idx])
        if n == 32:
            stamp(A, 4)
        if n == P1Opt.ATOM:
            A(f"s_cmp_lg_u32 s{sWave}, 0")
            A(f"s_cbranch_scc1 {L}_noat")
            A("s_mov_b64 exec, 1")
            A("s_waitcnt vmcnt(0)")
            A(f"buffer_atomic_add v{vOne}, off, {R(rM)}, s{sT3} sc1")
            A("s_mov_b64 exec, -1")
            A.label(f"{L}_noat")
        if n == 32 + P1Opt.PUBSTEP:
            A("s_mov_b64 exec, 1")
            A("s_waitcnt vmcnt(0)")
            A(f"buffer_store_dword v{vOne}, off, {RWS}, s{sF1}")
            A("s_mov_b64 exec, -1")
            stamp(A, 5)
    stamp(A, 6)
    D2, E, PH, KQ, WPF, VF, ON = [0, 16], 32, [48, 56], 64, 72, 80, 88
    A(f"s_and_b32 s{sT}, s{sWave}, 1")
    A(f"s_lshl_b32 s{sT}, s{sT}, 11")
    A(f"s_lshr_b32 s{sT2}, s{sWave}, 1")
    A(f"s_mul_i32 s{sT2}, s{sT2}, {SLOT}")
    A(f"s_add_u32 s{sT}, s{sT}, s{sT2}")
    A(f"s_add_u32 s{sT}, s{sT}, {L_QX}")
    A(f"v_add_u32 v{vT+2}, s{sT}, v{vL16}")
    wr = wphi_reads(A, vT, vT + 1, WPF)
    for i in range(8):
        A(f"v_cvt_pk_bf16_f32 v{PK[0]+i}, v{ACC[0]+2*i}, v{ACC[0]+2*i+1}")
    A(f"ds_write_b128 v{vT+2}, v[{PK[0]}:{PK[0]+3}]")
    A(f"ds_write_b128 v{vT+2}, v[{PK[0]+4}:{PK[0]+7}] offset:1024")
    for i in range(8):
        A(f"v_cvt_pk_bf16_f32 v{KQ+i}, v{ACC[1]+2*i}, v{ACC[1]+2*i+1}")
    A("s_waitcnt lgkmcnt(0)")
    A("s_barrier")
    stamp(A, 7)
    for r in wr:
        A(r)
    for i in range(8):
        A(f"v_cvt_pk_bf16_f32 v{VF+i}, v{ACC[2]+2*i}, v{ACC[2]+2*i+1}")
    for i in range(2):
        A(f"s_waitcnt lgkmcnt({2-2*i})")
        A(f"v_mfma_f32_32x32x16_bf16 v[{D2[i]}:{D2[i]+15}], v[{WPF+4*i}:{WPF+4*i+3}], v[{KQ+4*i}:{KQ+4*i+3}], 0")
    A(f"v_bfe_u32 v{vT+3}, v{vL}, 4, 1")
    A(f"v_and_b32 v{vT+4}, 0x1ff, v{vVo}")
    A(f"s_mul_i32 s{sT}, s{sWave}, {VB_RS}")
    A(f"s_add_u32 s{sT}, s{sT}, {L_VB}")
    A(f"v_mul_u32_u24 v{vT+3}, {4*VB_RS}, v{vT+3}")
    A(f"v_add_u32 v{vT+3}, s{sT}, v{vT+3}")
    A(f"v_add_u32 v{vT+4}, v{vT+3}, v{vT+4}")
    for i in range(4):
        A(f"v_mov_b32 v{ON+i}, 0x3f803f80")
    for grp in range(2):
        A(f"ds_write_b128 v{vT+4}, v[{VF+4*grp}:{VF+4*grp+3}] offset:{grp*512}")
    A(f"ds_write_b128 v{vT+3}, v[{ON}:{ON+3}] offset:1024")
    A(f"v_and_b32 v{vT+2}, 31, v{vL}")
    A(f"v_mul_u32_u24 v{vT+2}, {PHI_RS}, v{vT+2}")
    A(f"v_lshrrev_b32 v{vT+3}, 5, v{vL}")
    A(f"v_lshl_add_u32 v{vT+2}, v{vT+3}, 3, v{vT+2}")
    A(f"s_mul_i32 s{sT}, s{sWave}, {64*PHI_RS}")
    A(f"v_add_u32 v{vT+2}, s{sT}, v{vT+2}")
    for i in range(2):
        feature_map(A, D2[i], vT, vT + 1, E, PH[i], sC)
        for q in range(4):
            A(f"ds_write_b64 v{vT+2}, v[{PH[i]+2*q}:{PH[i]+2*q+1}] offset:{L_PHI + i*32*PHI_RS + q*16}")
    stamp(A, 8)
    A.label(f"{L}_cdone")

def kv_partial(A, L, PB, AC, vT):
    A(f"v_lshrrev_b32 v{vT+1}, 5, v{vL}")
    A(f"v_bfe_u32 v{vT}, v{vL}, 2, 2")
    A(f"v_lshl_add_u32 v{vT}, v{vT+1}, 2, v{vT}")
    A(f"v_mul_u32_u24 v{vT}, {PHI_RS}, v{vT}")
    A(f"v_bfe_u32 v{vT+3}, v{vL}, 4, 1")
    A(f"v_lshl_add_u32 v{vT}, v{vT+3}, 5, v{vT}")
    A(f"v_and_b32 v{vT+2}, 3, v{vL}")
    A(f"v_lshl_add_u32 v{vT}, v{vT+2}, 3, v{vT}")
    A(f"s_mul_i32 s{sT}, s{sWave}, {32*PHI_RS}")
    A(f"v_add_u32 v{vT}, s{sT}, v{vT}")
    A(f"v_cmp_eq_u32 vcc, 0, v{vT+3}")
    A(f"v_and_b32 v{vT+2}, 15, v{vL}")
    A(f"v_lshlrev_b32 v{vT+2}, 4, v{vT+2}")
    A(f"v_lshl_add_u32 v{vT+2}, v{vT+1}, 8, v{vT+2}")
    A(f"v_add_u32 v{vT+3}, 512, v{vT+2}")
    A(f"v_mov_b32 v{vT+1}, 1024")
    A(f"s_mul_i32 s{sT}, s{sWave}, {4*VB_RS}")
    A(f"v_cndmask_b32 v{vT+2}, v{vT+1}, v{vT+2}, vcc")
    A(f"v_cndmask_b32 v{vT+3}, v{vT+1}, v{vT+3}, vcc")
    A(f"v_add_u32 v{vT+2}, s{sT}, v{vT+2}")
    A(f"v_add_u32 v{vT+3}, s{sT}, v{vT+3}")
    LD = Track(A, "lgkmcnt", 15)
    def rd(n):
        rt, m = n // 2, n % 2
        b = PB + n * 8
        for u in range(2):
            LD(f"ds_read_b64_tr_b16 v[{b+2*u}:{b+2*u+1}], v{vT} offset:{L_PHI + rt*64*PHI_RS + (16*m+8*u)*PHI_RS}", n)
        LD(f"ds_read_b128 v[{b+4}:{b+7}], v{vT+2+m} offset:{L_VB + rt*VB_RS}", n)
    for n in range(4):
        rd(n)
    A(f"s_lshl_b32 s{sT}, s{sCT}, 1")
    A(f"s_add_u32 s{sT}, s{sT}, s{sWave}")
    A(f"s_lshl_b32 s{sT}, s{sT}, 4")
    A(f"s_add_u32 s{sT}, s{sT}, s{sRB}")
    A(f"s_lshl_b32 s{sT}, s{sT}, 12")
    A(f"s_add_u32 s{sT}, s{sT}, {WS_KV:#x}")
    ac = f"v[{AC}:{AC+15}]"
    for n in range(8):
        b = PB + n * 8
        LD.wait(n)
        A(f"v_mfma_f32_32x32x16_bf16 {ac}, v[{b}:{b+3}], v[{b+4}:{b+7}], {'0' if n == 0 else ac}")
        if n + 4 < 8:
            rd(n + 4)
    A("s_nop 11")
    for q in range(4):
        A(f"buffer_store_dwordx4 v[{AC+4*q}:{AC+4*q+3}], v{vL16}, {RWS}, s{sT} offen offset:{q*1024}")
```

```python
from collections import defaultdict
from fy_common import *
import fy1

class P2Opt:
    PB, PQK, PA, PX = 2, 7, 12, 15
    T_PUB = 5
    T_POLL = 10
    T_CHK = 13
    T_SUM = 21
    T_XB = 24
    T_PUB2 = 32
    T_POLL2 = 38
    T_OB = 41
    T_P3B = 44
    T_OA = 62
    PRIO = {0: 3, 7: 2, 11: 1, 13: 0, 14: 3, 19: 2, 22: 1, 23: 0, 24: 3, 44: 2, 56: 1, 62: 0}
    STAMPS = {4:9,6:10,8:11,12:42,14:43,16:12,24:13,32:14,34:44,40:15,42:45,44:46,48:48,56:49}

XB = 32768
XRS = 528
XKQ = 32 * XRS

def gen(A, L, upto):
    A(f"s_branch {L}_cdone")
    fy1.compute(A, L)

    O, S = 0, [16, 32]
    Q, K, Va, Vb = 48, 52, 56, 60
    vIdx, vKa, vVa, vVb, vG, vT = 64, 65, 67, 69, 71, 72
    PQ, KVP, DB, ACC, WO, FL = 80, 88, 120, 136, 168, 232
    OF = KVP
    vOne, vPad, vFa = 240, 241, 242
    sTile, sKV, sOw, sWo, sOF, sMask, sSpin, sM = S0, S0 + 1, S0 + 2, S0 + 3, S0 + 4, S0 + 5, S0 + 6, S0 + 7
    sAcc, sFL, sCB, sKQ, sC2, sOF2, sInf, sVer, sRdy, sK8 = 84, 86, 87, 88, 89, 90, 91, 92, 93, 94
    rOUT = rX
    P = P2Opt

    vm, lds = [], []
    def VM(ins, tag=None):
        A(ins); vm.append(tag)
    def vwait(tag, extra=""):
        n = len(vm) - 1 - max(i for i, x in enumerate(vm) if x == tag)
        assert n <= 63
        A(f"s_waitcnt vmcnt({n}){extra}")
    def LD(ins, tag=None):
        A(ins); lds.append(tag)
    def lwait(tag):
        n = len(lds) - 1 - max(i for i, x in enumerate(lds) if x == tag)
        A(f"s_waitcnt lgkmcnt({min(n, 15)})")

    stamp(A, 41)
    A(f"s_lshl_b32 s{sTile}, s{sQB}, 3")
    A(f"s_add_u32 s{sTile}, s{sTile}, s{sWave}")
    A(f"s_lshl_b32 s{sKV}, s{sHead}, 17")
    A(f"s_add_u32 s{sKV}, s{sKV}, {WS_K:#x}")
    A(f"v_mov_b32 v{vT}, {TS}")
    A(f"v_mov_b32 v{vT+1}, {KVBASE + 2048}")
    A(f"v_mad_u32_u24 v{vPad}, v{vL}, v{vT}, v{vT+1}")
    for i in range(4):
        A(f"v_mov_b32 v{DB+i}, 0x3f803f80")
    A(f"v_add_u32 v{vKa}, {KVBASE}, v{vL16}")
    A(f"v_add_u32 v{vKa+1}, {KVBASE + 32*TS}, v{vL16}")
    A(f"v_and_b32 v{vT}, 15, v{vL}")
    A(f"v_lshlrev_b32 v{vT}, 4, v{vT}")
    A(f"v_lshrrev_b32 v{vT+1}, 5, v{vL}")
    A(f"v_lshl_add_u32 v{vT}, v{vT+1}, 8, v{vT}")
    A(f"v_and_b32 v{vT+1}, 16, v{vL}")
    A(f"v_cmp_eq_u32 vcc, 0, v{vT+1}")
    A(f"v_add_u32 v{vT+2}, {KVBASE + 1024}, v{vT}")
    A(f"v_add_u32 v{vT+3}, {KVBASE + 1536}, v{vT}")
    A(f"v_mov_b32 v{vT+4}, {KVBASE + 2048}")
    A(f"v_cndmask_b32 v{vVa}, v{vT+4}, v{vT+2}, vcc")
    A(f"v_cndmask_b32 v{vVb}, v{vT+4}, v{vT+3}, vcc")
    A(f"v_add_u32 v{vVa+1}, {32*TS}, v{vVa}")
    A(f"v_add_u32 v{vVb+1}, {32*TS}, v{vVb}")
    A(f"v_mov_b32 v{vIdx}, 0xdddddddd")
    A(f"v_mov_b32 v{vOne}, 1")
    A(f"v_lshlrev_b32 v{vFa}, 6, v{vL}")
    for i in range(16):
        A(f"v_mov_b32 v{O+i}, 0")
    A(f"s_lshr_b32 s{sKQ}, s{sWave}, 1")
    A(f"s_and_b32 s{sC2}, s{sWave}, 1")
    A(f"s_mul_i32 s{sT}, s{sKQ}, {TS}")
    A(f"s_lshl_b32 s{sT2}, s{sC2}, 10")
    A(f"s_add_u32 s{sT}, s{sT}, s{sT2}")
    A(f"s_add_u32 s{sT}, s{sT}, {L_QT}")
    A(f"v_add_u32 v{vT}, s{sT}, v{vL16}")
    A(f"s_lshl_b32 s{sOw}, s{sWave}, 16")
    A(f"s_add_u32 s{sOw}, s{sOw}, s{sOo}")
    A(f"s_bfe_u32 s{sCB}, s2, 0x20003")
    A(f"s_lshr_b32 s{sT}, s{sHead}, 1")
    A(f"s_lshl_b32 s{sT2}, s{sC2}, 4")
    A(f"s_add_u32 s{sT}, s{sT}, s{sT2}")
    A(f"s_lshl_b32 s{sT2}, s{sCB}, 2")
    A(f"s_add_u32 s{sT2}, s{sT2}, s{sWave}")
    A(f"s_add_u32 s{sT2}, s{sT2}, 12")
    A(f"s_cmp_lt_u32 s{sWave}, 4")
    A(f"s_cselect_b32 s{sFL}, s{sT}, s{sT2}")
    A(f"s_lshl_b32 s{sFL}, s{sFL}, 12")
    A(f"s_add_u32 s{sFL}, s{sFL}, {F1L:#x}")
    A(f"s_lshl_b32 s{sWo}, s{sCB}, 1")
    A(f"s_add_u32 s{sWo}, s{sWo}, s{sC2}")
    A(f"s_lshl_b32 s{sWo}, s{sWo}, 17")
    A(f"s_lshl_b32 s{sT}, s{sKQ}, 13")
    A(f"s_add_u32 s{sWo}, s{sWo}, s{sT}")
    A(f"s_add_u32 s{sWo}, s{sWo}, {WS_WO:#x}")
    A(f"s_and_b32 s{sOF}, s2, 7")
    A(f"s_lshl_b32 s{sT2}, s{sQB}, 3")
    A(f"s_add_u32 s{sOF}, s{sOF}, s{sT2}")
    A(f"s_lshl_b32 s{sOF}, s{sOF}, 16")
    A(f"s_add_u32 s{sOF}, s{sOF}, s{sT}")
    A(f"s_add_u32 s{sOF}, s{sOF}, {WS_O:#x}")
    A(f"s_mul_i32 s{sM}, s{sWave}, {TS}")
    A(f"s_lshl_b32 s{sT}, s{sWave}, 11")
    A(f"s_add_u32 s{sKV}, s{sKV}, s{sT}")
    A(f"s_waitcnt vmcnt({0 if fy1.P1Opt.NOPQ else 6}) lgkmcnt(0)")
    stamp(A, 50)
    A("s_barrier")
    stamp(A, 51)
    A(f"s_cmp_ge_u32 s{sWave}, 2")
    A(f"s_cbranch_scc1 {L}_nokv")
    A("s_setprio 3")
    fy1.kv_partial(A, L, WO, ACC, FL)
    A.label(f"{L}_nokv")
    vm.append("p1")

    q = f"v[{Q}:{Q+3}]"; k = f"v[{K}:{K+3}]"; va = f"v[{Va}:{Va+3}]"; vb = f"v[{Vb}:{Vb+3}]"
    o = f"v[{O}:{O+15}]"
    def rd(reg, base, t, tag):
        LD(f"ds_read_b128 {reg}, v{base + t // 32} offset:{(t % 32) * TS}", (tag, t))
    LD(f"ds_read_b128 {q}, v{vT}", "q")
    rd(k, vKa, 0, "k")
    LD(f"ds_write_b128 v{vPad}, v[{DB}:{DB+3}]")
    rd(va, vVa, 0, "va")

    ev = defaultdict(list)
    def at(t, p, f):
        ev[(t, p)].append(f)

    def chunk(c):
        def f():
            A(f"s_add_u32 m0, s{sM}, {KVBASE + 8*c*TS}")
            A(f"s_add_u32 s{sT}, s{sKV}, {c*16384}")
            VM(f"buffer_load_dwordx4 v{vL16}, {RWS}, s{sT} offen lds", "ch")
            VM(f"buffer_load_dwordx4 v{vL16}, {RWS}, s{sT} offen offset:1024 lds", "ch")
        return f
    chunk(2)()
    for c in range(3, 7):
        at(c - 3, 9, chunk(c))
    at(14, 1, chunk(7))
    lwait(("k", 0))
    A(f"v_mfma_f32_32x32x16_bf16 v[{S[0]}:{S[0]+15}], {k}, {q}, 0")
    rd(k, vKa, 1, "k")
    A("s_nop 10")

    def pub():
        vwait("p1")
        A("s_mov_b64 exec, 1")
        VM(f"buffer_store_dword v{vOne}, off, {RWS}, s{sF1L}")
        A("s_mov_b64 exec, -1")
    at(P.T_PUB, 4, pub)
    def fl_loads(V):
        V(f"buffer_load_dword v{FL}, v{vFa}, {RWS}, s{sFL} offen sc1", "fl")
    def fl_check():
        A(f"v_cmp_ne_u32 vcc, 1, v{FL}")
    at(P.T_POLL, 4, lambda: fl_loads(VM))
    def chk():
        vwait("fl")
        fl_check()
        A(f"s_cbranch_vccnz {L}_flspin")
        A.label(f"{L}_flok")
    at(P.T_CHK, 4, chk)
    def tail(f):
        main = A.lines; A.lines = []
        f()
        A.tails.append(A.lines); A.lines = main
    def flspin():
        A.label(f"{L}_flspin")
        A(f"s_mov_b32 s{sSpin}, {SPIN:#x}")
        A.label(f"{L}_flspin1")
        fl_loads(lambda i, t: A(i))
        A(f"s_sub_u32 s{sSpin}, s{sSpin}, 1")
        A(f"s_cbranch_scc1 {L}_flok")
        A("s_waitcnt vmcnt(0)")
        fl_check()
        A(f"s_cbranch_vccnz {L}_flspin1")
        A(f"s_branch {L}_flok")
    tail(flspin)
    def b14():
        vwait("ch")
        A("s_barrier")
    at(14, 0, b14)
    late = []
    def kvp_addr():
        A(f"s_lshl_b32 s{sT2}, s{sHead}, 16")
        A(f"s_lshr_b32 s{sT}, s{sWave}, 2")
        A(f"s_lshl_b32 s{sT}, s{sT}, 15")
        A(f"s_add_u32 s{sT2}, s{sT2}, s{sT}")
        A(f"s_and_b32 s{sT}, s{sWave}, 3")
        A(f"s_lshl_b32 s{sT}, s{sT}, 10")
        A(f"s_add_u32 s{sT2}, s{sT2}, s{sT}")
    def kvp(i):
        def f():
            if i == 0:
                kvp_addr()
            A(f"s_add_u32 s{sT}, s{sT2}, {WS_KV + i*4096:#x}")
            VM(f"buffer_load_dwordx4 v[{KVP+4*i}:{KVP+4*i+3}], v{vL16}, {RWS}, s{sT} offen", "kvp")
        return f
    late += [kvp(i) for i in range(8)]
    def pq():
        A(f"s_lshl_b32 s{sT}, s{sHead}, 17")
        A(f"s_lshl_b32 s{sT2}, s{sTile}, 11")
        A(f"s_add_u32 s{sT}, s{sT}, s{sT2}")
        A(f"s_add_u32 s{sT}, s{sT}, {WS_PQ:#x}")
        VM(f"buffer_load_dwordx4 v[{PQ}:{PQ+3}], v{vL16}, {RWS}, s{sT} offen", "pq")
        VM(f"buffer_load_dwordx4 v[{PQ+4}:{PQ+7}], v{vL16}, {RWS}, s{sT} offen offset:1024", "pq")
    def gl():
        A(f"v_and_b32 v{vT}, 31, v{vL}")
        A(f"s_lshl_b32 s{sT}, s{sCB}, 13")
        A(f"s_lshl_b32 s{sT2}, s{sTile}, 7")
        A(f"v_lshlrev_b32 v{vT}, 2, v{vT}")
        A(f"s_add_u32 s{sT}, s{sT}, s{sT2}")
        A(f"s_add_u32 s{sT}, s{sT}, {WS_G:#x}")
        VM(f"buffer_load_dword v{vG}, v{vT}, {RWS}, s{sT} offen", "pq")
    late += [pq, gl]
    def wo(n, br):
        i, j = n // 2, n % 2
        def f():
            A(f"s_add_u32 s{sT}, s{sWo}, {j*65536 + br*32768 + i*1024:#x}")
            VM(f"buffer_load_dwordx4 v[{WO+4*n}:{WO+4*n+3}], v{vL16}, {RWS}, s{sT} offen", ("wo", br))
        return f
    late += [wo(n, 1) for n in range(16)]
    for n, f in enumerate(late):
        at(14 + n // 3, (4, 9, 14)[n % 3], f)
    def ksum(step):
        def f():
            if step == 0:
                vwait("kvp")
            n = 16 >> step
            for i in range(n):
                A(f"v_add_f32 v{KVP+i}, v{KVP+i}, v{KVP+n+i}")
        return f
    at(P.T_SUM, 4, ksum(0)); at(P.T_SUM + 1, 4, ksum(1)); at(P.T_SUM + 1, 9, ksum(2))
    def kwr():
        A(f"s_lshr_b32 s{sT}, s{sWave}, 1")
        A(f"s_lshl_b32 s{sT}, s{sT}, 10")
        A(f"s_lshl_b32 s{sT2}, s{sC2}, 3")
        A(f"s_add_u32 s{sT}, s{sT}, s{sT2}")
        A(f"v_cvt_pk_bf16_f32 v{vT}, v{KVP}, v{KVP+1}")
        A(f"v_cvt_pk_bf16_f32 v{vT+1}, v{KVP+2}, v{KVP+3}")
        A(f"v_add_u32 v{vT+2}, s{sT}, v{vL16}")
        LD(f"ds_write_b64 v{vT+2}, v[{vT}:{vT+1}] offset:{L_KVB}", "kvw")
    at(P.T_SUM + 1, 14, kwr)
    def bx():
        vwait("ch")
        lwait("kvw")
        A("s_barrier")
        for n in range(4):
            LD(f"ds_read_b128 v[{KVP+4*n}:{KVP+4*n+3}], v{vL16} offset:{L_KVB + n*1024}", ("kvf", n))
    at(P.T_XB, 0, bx)
    def bm(n):
        def f():
            if n == 0:
                vwait("pq")
            lwait(("kvf", n))
            pqr = PQ + 4 * (n % 2)
            A(f"v_mfma_f32_32x32x16_bf16 v[{DB}:{DB+15}], v[{KVP+4*n}:{KVP+4*n+3}], v[{pqr}:{pqr+3}], {'0' if n == 0 else f'v[{DB}:{DB+15}]'}")
        return f
    for n in range(4):
        at(P.T_XB + n, P.PX, bm(n))
    def bfin():
        A(f"v_add_f32 v{vT}, {f2u(1e-6):#x}, v{DB+8}")
        A(f"v_rcp_f32 v{vT}, v{vT}")
        A(f"v_sub_f32 v{vT+1}, 1.0, v{vG}")
        A(f"s_add_u32 s{sT}, s{sOw}, 32768")
        A(f"v_mul_f32 v{vT}, v{vT}, v{vT+1}")
        for i in range(8):
            A(f"v_mul_f32 v{DB+i}, v{DB+i}, v{vT}")
        for i in range(4):
            A(f"v_cvt_pk_bf16_f32 v{DB+8+i}, v{DB+2*i}, v{DB+2*i+1}")
        for i in range(4):
            A(f"v_mov_b32 v{DB+12+i}, -1")
        VM(f"buffer_store_dwordx4 v[{DB+8}:{DB+11}], v{vL16}, {RWS}, s{sT} offen", "ob")
        if fy1.P1Opt.NOPQ < 2:
            VM(f"buffer_store_dwordx4 v[{DB+12}:{DB+15}], v{vL16}, {RWS}, s{sOw} offen", "ob")
    at(P.T_XB + 4, 14, bfin)
    def pub2():
        vwait("ob")
        A("s_mov_b64 exec, 1")
        VM(f"buffer_store_dword v{vOne}, off, {RWS}, s{sF2}")
        A("s_mov_b64 exec, -1")
    at(P.T_PUB2, 4, pub2)
    def f2_load(V):
        V(f"buffer_load_dword v{FL}, v{vFa}, {RWS}, s{sFL} offen sc1", "f2")
    def f2_poll():
        A(f"s_sub_u32 s{sFL}, s{sOF}, {WS_O:#x}")
        A(f"v_and_b32 v{vFa}, 7, v{vL}")
        A(f"s_lshr_b32 s{sFL}, s{sFL}, 16")
        A(f"s_lshl_b32 s{sFL}, s{sFL}, 2")
        A(f"s_add_u32 s{sFL}, s{sFL}, s{sKQ}")
        A(f"s_lshl_b32 s{sFL}, s{sFL}, 9")
        A(f"v_lshlrev_b32 v{vFa}, 6, v{vFa}")
        A(f"s_add_u32 s{sFL}, s{sFL}, {F2:#x}")
        f2_load(VM)
    at(P.T_POLL2, 4, f2_poll)
    def f2chk():
        vwait("f2")
        A(f"v_cmp_eq_u32 vcc, 0, v{FL}")
        A(f"s_cbranch_vccnz {L}_obspin")
        A.label(f"{L}_obok")
    at(P.T_OB, 3, f2chk)
    def obspin():
        A.label(f"{L}_obspin")
        A(f"s_mov_b32 s{sSpin}, {SPIN:#x}")
        A.label(f"{L}_obspin1")
        f2_load(lambda i, t: A(i))
        A(f"s_sub_u32 s{sSpin}, s{sSpin}, 1")
        A(f"s_cbranch_scc1 {L}_obok")
        A("s_waitcnt vmcnt(0)")
        A(f"v_cmp_eq_u32 vcc, 0, v{FL}")
        A(f"s_cbranch_vccnz {L}_obspin1")
        A(f"s_branch {L}_obok")
    tail(obspin)
    def of_load(V, i, br, sc=""):
        if br:
            A(f"s_add_u32 s{sT}, s{sOF}, {br*32768 + i*1024:#x}")
            V(f"buffer_load_dwordx4 v[{OF+4*i}:{OF+4*i+3}], v{vL16}, {RWS}, s{sT} offen{sc}", ("of", br, i))
        else:
            V(f"buffer_load_dwordx4 v[{OF+4*i}:{OF+4*i+3}], v{vL16}, {RWS}, s{sOF2 if i >= 4 else sOF} offen offset:{(i%4)*1024}{sc}", ("of", br, i))
    for i in range(8):
        at(P.T_OB + i // 3, (4, 9, 14)[i % 3], lambda i=i: of_load(VM, i, 1))
    def p3m(n, first=False):
        i, j = n // 2, n % 2
        acc = f"v[{ACC+16*j}:{ACC+16*j+15}]"
        A(f"v_mfma_f32_32x32x16_bf16 {acc}, v[{WO+4*n}:{WO+4*n+3}], v[{OF+4*i}:{OF+4*i+3}], {'0' if first else acc}")
    for n in range(16):
        def f(n=n):
            if n % 2 == 0:
                vwait(("of", 1, n // 2))
            p3m(n, n < 2)
            wo(n, 0)()
        at(P.T_P3B + n, P.PX, f)
    assert P.T_P3B + 15 < P.T_OA
    at(P.T_OA, 4, lambda: f2_load(VM))

    for t in range(64):
        cur, nxt = S[t & 1], S[(t + 1) & 1]
        if t in P.STAMPS:
            stamp(A, P.STAMPS[t])
        for i in range(17):
            for f in ev.pop((t, i), []):
                f()
            if i == 0 and t in P.PRIO:
                A(f"s_setprio {P.PRIO[t]}")
            if i == P.PB:
                if t > 0:
                    lwait(("vb", t - 1))
                    A(f"v_smfmac_f32_32x32x32_bf16 {o}, {vb}, v[{nxt+8}:{nxt+15}], v{vIdx}")
                rd(vb, vVb, t, "vb")
            if i == P.PQK and t < 63:
                lwait(("k", t + 1))
                A(f"v_mfma_f32_32x32x16_bf16 v[{nxt}:{nxt+15}], {k}, {q}, 0")
                if t < 62:
                    rd(k, vKa, t + 2, "k")
            if i == P.PA:
                lwait(("va", t))
                A(f"v_smfmac_f32_32x32x32_bf16 {o}, {va}, v[{cur}:{cur+7}], v{vIdx}")
                if t < 63:
                    rd(va, vVa, t + 1, "va")
            if i < 16:
                A(f"v_exp_f32 v{cur+i}, v{cur+i}")
    assert not ev, ev.keys()
    last = S[1]
    A("s_waitcnt lgkmcnt(0)")
    A("s_nop 0")
    A(f"v_smfmac_f32_32x32x32_bf16 {o}, {vb}, v[{last+8}:{last+15}], v{vIdx}")
    stamp(A, 52)
    x0, x1, x2 = S[0], S[0] + 1, S[0] + 2
    A(f"v_and_b32 v{x0}, 31, v{vL}")
    A(f"v_mul_u32_u24 v{x0}, {XRS}, v{x0}")
    A(f"v_lshrrev_b32 v{x1}, 5, v{vL}")
    A(f"v_lshl_add_u32 v{x0}, v{x1}, 4, v{x0}")
    A(f"s_mul_i32 s{sT}, s{sKQ}, {XKQ}")
    A(f"s_lshl_b32 s{sT2}, s{sC2}, 8")
    A(f"s_add_u32 s{sT}, s{sT}, s{sT2}")
    A(f"s_add_u32 s{sT}, s{sT}, {XB}")
    A(f"v_add_u32 v{x0}, s{sT}, v{x0}")
    A(f"s_mov_b32 s{sMask}, 0xff")
    A(f"s_mov_b32 s{sSpin}, {SPIN:#x}")
    A(f"s_mov_b32 s{sInf}, 0")
    A(f"s_add_u32 s{sOF2}, s{sOF}, 4096")
    A(f"v_mov_b32 v{vOne}, 2")
    A(f"v_add_f32_e64 v{vT}, |v{O}|, |v{O+1}|")
    A(f"v_min3_f32 v{vT+1}, |v{O}|, |v{O+1}|, |v{O+2}|")
    A(f"v_rcp_f32 v{vT+2}, v{O+8}")
    for i in range(2, 8):
        A(f"v_add_f32_e64 v{vT}, v{vT}, |v{O+i}|")
    A(f"v_min3_f32 v{vT+1}, v{vT+1}, |v{O+3}|, |v{O+4}|")
    A(f"v_min3_f32 v{vT+1}, v{vT+1}, |v{O+5}|, |v{O+6}|")
    A(f"v_min_f32_e64 v{vT+1}, v{vT+1}, |v{O+7}|")
    A(f"v_cmp_le_f32 vcc, {f2u(2.0**-60):#x}, v{O+8}")
    A(f"s_mov_b64 s[{sAcc}:{sAcc+1}], vcc")
    A(f"v_cmp_ge_f32 vcc, {f2u(2.0**100):#x}, v{O+8}")
    A(f"s_and_b64 s[{sAcc}:{sAcc+1}], s[{sAcc}:{sAcc+1}], vcc")
    A(f"v_cmp_ge_f32 vcc, {f2u(2.0**120):#x}, v{vT}")
    A(f"s_and_b64 s[{sAcc}:{sAcc+1}], s[{sAcc}:{sAcc+1}], vcc")
    A(f"v_cmp_le_f32 vcc, {f2u(2.0**-100):#x}, v{vT+1}")
    A(f"s_and_b64 s[{sAcc}:{sAcc+1}], s[{sAcc}:{sAcc+1}], vcc")
    A(f"s_cmp_eq_u64 s[{sAcc}:{sAcc+1}], -1")
    A(f"s_cbranch_scc0 {L}_slow")
    A.label(f"{L}_fin")
    A(f"v_mul_f32 v{vT}, v{vT+2}, v{vG}")
    for i in range(8):
        A(f"v_mul_f32 v{O+i}, v{O+i}, v{vT}")
    for i in range(4):
        A(f"v_cvt_pk_bf16_f32 v{K+i}, v{O+2*i}, v{O+2*i+1}")
    A(f"buffer_store_dwordx4 {k}, v{vL16}, {RWS}, s{sOw} offen")
    A("s_mov_b64 exec, 1")
    A(f"buffer_store_dword v{vOne}, off, {RWS}, s{sF2}")
    A("s_mov_b64 exec, -1")
    stamp(A, 53)
    A("s_barrier")
    A("s_waitcnt vmcnt(2)")
    A(f"s_branch {L}_p3a")
    A.label(f"{L}_p3l")
    A("s_waitcnt vmcnt(0)")
    A.label(f"{L}_p3a")
    NV = lambda i, t: A(i)
    A(f"v_cmp_eq_u32 vcc, 2, v{FL}")
    A(f"s_mov_b32 s{sVer}, s{sInf}")
    A(f"s_and_b32 s{sInf}, vcc_lo, s{sMask}")
    A(f"s_cbranch_scc0 {L}_p3b")
    for i in range(8):
        A(f"s_bitcmp1_b32 s{sInf}, {i}")
        A(f"s_cbranch_scc0 {L}_m{i}")
        of_load(NV, i, 0)
        A.label(f"{L}_m{i}")
    A.label(f"{L}_p3b")
    A(f"s_andn2_b32 s{sMask}, s{sMask}, s{sInf}")
    A(f"s_cbranch_scc0 {L}_p3c")
    f2_load(NV)
    A.label(f"{L}_p3c")
    A(f"s_cmp_eq_u32 s{sVer}, 0")
    A(f"s_cbranch_scc1 {L}_p3d")
    for i in range(8):
        A(f"s_bitcmp1_b32 s{sVer}, {i}")
        A(f"s_cbranch_scc0 {L}_n{i}")
        A(f"v_max3_u32 v{vT}, v{OF+4*i}, v{OF+4*i+1}, v{OF+4*i+2}")
        A(f"v_max_u32 v{vT}, v{vT}, v{OF+4*i+3}")
        A(f"v_cmp_eq_u32 vcc, -1, v{vT}")
        A(f"s_cbranch_vccnz {L}_r{i}")
        p3m(2 * i); p3m(2 * i + 1)
        A.label(f"{L}_n{i}")
        def retry(i=i):
            A.label(f"{L}_r{i}")
            of_load(NV, i, 0, " sc1")
            A(f"s_bitset1_b32 s{sInf}, {i}")
            A(f"s_branch {L}_n{i}")
        tail(retry)
    A.label(f"{L}_p3d")
    A(f"s_sub_u32 s{sSpin}, s{sSpin}, 1")
    A(f"s_cbranch_scc1 {L}_p3x")
    A(f"s_or_b32 s{sT}, s{sMask}, s{sInf}")
    A(f"s_cbranch_scc1 {L}_p3l")
    A.label(f"{L}_p3x")
    stamp(A, 54)
    A(f"v_lshrrev_b32 v{x1}, 4, v{vL}")
    A(f"v_and_b32 v{x2}, 15, v{vL}")
    A(f"v_lshlrev_b32 v{x2}, 4, v{x2}")
    A(f"v_lshl_add_u32 v{vT+1}, v{x1}, 10, v{x2}")
    A(f"v_mul_u32_u24 v{x1}, {XRS}, v{x1}")
    A(f"v_lshl_add_u32 v{x1}, v{x2}, 1, v{x1}")
    A(f"s_mul_i32 s{sT}, s{sWave}, {4*XRS}")
    A(f"s_add_u32 s{sT}, s{sT}, {XB}")
    A(f"v_add_u32 v{x1}, s{sT}, v{x1}")
    srd(A, rOUT, pOUT, 2 * MB)
    for j in range(2):
        for qd in range(4):
            r = ACC + 16 * j + 4 * qd
            A(f"ds_write_b128 v{x0}, v[{r}:{r+3}] offset:{j*128 + qd*32}")
    A(f"s_and_b32 s{sT}, s2, 7")
    A(f"s_lshl_b32 s{sT2}, s{sQB}, 3")
    A(f"s_add_u32 s{sT}, s{sT}, s{sT2}")
    A(f"s_lshl_b32 s{sT}, s{sT}, 3")
    A(f"s_add_u32 s{sT}, s{sT}, s{sWave}")
    A(f"s_lshl_b32 s{sT}, s{sT}, 12")
    A(f"s_lshl_b32 s{sT2}, s{sCB}, 8")
    A(f"s_add_u32 s{sT}, s{sT}, s{sT2}")
    A("s_waitcnt lgkmcnt(0)")
    A("s_barrier")
    stamp(A, 55)
    for kq in range(4):
        for h in range(2):
            r = WO + 8 * kq + 4 * h
            A(f"ds_read_b128 v[{r}:{r+3}], v{x1} offset:{kq*XKQ + h*16}")
    for kq in range(1, 4):
        A(f"s_waitcnt lgkmcnt({6 - 2*kq})")
        for i in range(8):
            A(f"v_add_f32 v{WO+i}, v{WO+i}, v{WO+8*kq+i}")
    for i in range(4):
        A(f"v_cvt_pk_bf16_f32 v{K+i}, v{WO+2*i}, v{WO+2*i+1}")
    A(f"buffer_store_dwordx4 {k}, v{vT+1}, {R(rOUT)}, s{sT} offen")
    stamp_end(A, 0, rWS, sWave)

    def slow():
        NM = DB
        s0 = S[1]
        sIt = sT3
        A.label(f"{L}_slow")
        A(f"v_mov_b32 v{vT}, 0xff800000")
        A(f"v_mov_b32 v{vT+3}, v{vKa}")
        A(f"s_mov_b32 s{sIt}, 0")
        A.label(f"{L}_mloop")
        A(f"ds_read_b128 {k}, v{vT+3}")
        A(f"v_add_u32 v{vT+3}, {TS}, v{vT+3}")
        A(f"s_add_u32 s{sIt}, s{sIt}, 1")
        A("s_waitcnt lgkmcnt(0)")
        A(f"v_mfma_f32_32x32x16_bf16 v[{s0}:{s0+15}], {k}, {q}, 0")
        A(f"s_cmp_lt_u32 s{sIt}, 64")
        A("s_nop 11")
        for i in range(8):
            A(f"v_max3_f32 v{vT}, v{vT}, v{s0+2*i}, v{s0+2*i+1}")
        A(f"s_cbranch_scc1 {L}_mloop")
        A(f"v_mov_b32 v{vT+1}, v{vT}")
        A("s_nop 1")
        A(f"v_permlane32_swap_b32 v{vT}, v{vT+1}")
        A("s_nop 0")
        A(f"v_max_f32 v{vT}, v{vT}, v{vT+1}")
        for i in range(16):
            A(f"v_xor_b32 v{NM+i}, 0x80000000, v{vT}")
            A(f"v_mov_b32 v{O+i}, 0")
        A(f"v_mov_b32 v{vT+3}, v{vKa}")
        A(f"v_mov_b32 v{vT+4}, v{vVa}")
        A(f"v_mov_b32 v{vT+5}, v{vVb}")
        A(f"s_mov_b32 s{sIt}, 0")
        A.label(f"{L}_sloop")
        A(f"ds_read_b128 {k}, v{vT+3}")
        A(f"ds_read_b128 {va}, v{vT+4}")
        A(f"ds_read_b128 {vb}, v{vT+5}")
        for i in range(3, 6):
            A(f"v_add_u32 v{vT+i}, {TS}, v{vT+i}")
        A(f"s_add_u32 s{sIt}, s{sIt}, 1")
        A("s_waitcnt lgkmcnt(0)")
        A(f"v_mfma_f32_32x32x16_bf16 v[{s0}:{s0+15}], {k}, {q}, v[{NM}:{NM+15}]")
        A(f"s_cmp_lt_u32 s{sIt}, 64")
        A("s_nop 11")
        for i in range(16):
            A(f"v_exp_f32 v{s0+i}, v{s0+i}")
        A("s_nop 1")
        A(f"v_smfmac_f32_32x32x32_bf16 {o}, {va}, v[{s0}:{s0+7}], v{vIdx}")
        A(f"v_smfmac_f32_32x32x32_bf16 {o}, {vb}, v[{s0+8}:{s0+15}], v{vIdx}")
        A("s_nop 7")
        A(f"s_cbranch_scc1 {L}_sloop")
        A("s_nop 7")
        A(f"v_rcp_f32 v{vT+2}, v{O+8}")
        A("s_nop 0")
        A(f"s_branch {L}_fin")
    tail(slow)
```

```python
from common import *

WS_WO = 20 * MB
FZ_END = 21 * MB
F1 = WS_F
F1L = WS_F + 65536
F2 = WS_F + 4 * 65536

LDS_TOTAL = 163840
SLOT = 28672
RING = 20480
def slot(i): return RING + (i % 5) * SLOT
A_SLOT = [slot(i) for i in range(8)]
B_SLOT = [slot(3), slot(4), slot(0), slot(1)]
TS = 2064
KVBASE = LDS_TOTAL - 64 * TS
PHI_RS = 72
L_PHI = 0
L_WOS = 0
L_KVB = 0
L_WPHI = 18432
L_VB = 20480
VB_RS = 1040
L_QX = slot(3) + 24576
L_QT = KVBASE + 56 * TS

sWave = 3
pX, pWA, pWOA, pBX, pWB, pPHI, pWOB, pGATE, pOUT, pDBG, pWS = 4, 6, 8, 10, 12, 14, 16, 18, 20, 22, 24
rX, rW0, rW1, rWS, rM, rM2 = 28, 32, 36, 44, 48, 52
sRB, sCT, sSt = 56, 57, 60
sF1, sF1L, sOo, sF2 = 61, 62, 63, 64
sHead, sQB = 66, 67
sT, sT2, sT3 = 68, 69, 70
sC = 71
S0 = 72
vL, vL16 = 250, 251
RWS = f"s[{rWS}:{rWS+3}]"
SPIN = 0x8000

def R(r):
    return f"s[{r}:{r+3}]"

class Track:
    def __init__(self, A, name, mx):
        self.A, self.name, self.mx, self.q = A, name, mx, []
    def __call__(self, ins, tag=None):
        self.A(ins); self.q.append(tag)
    def n(self, tag):
        return len(self.q) - 1 - max(i for i, x in enumerate(self.q) if x == tag)
    def wait(self, tag):
        n = self.n(tag)
        if self.name == "vmcnt":
            assert n <= self.mx
        self.A(f"s_waitcnt {self.name}({min(n, self.mx)})")
```

```python
from common import *

SLOT = 40960
NSLOT = 3
K1_LDS = SLOT * NSLOT
PHI_RS = 64
PHI_REG = 0
VB_REG = 4 * 4 * 32 * PHI_RS

def feature_map(A, P, T0, T1, E, PH, sC):
    p = [vr(P + i) for i in range(8)]
    t0, t1 = vr(T0), vr(T1)
    A(f"v_max3_f32 {t0}, {p[0]}, {p[1]}, {p[2]}")
    A(f"v_max3_f32 {t1}, -{p[0]}, -{p[1]}, -{p[2]}")
    A(f"v_max3_f32 {t0}, {t0}, {p[3]}, {p[4]}")
    A(f"v_max3_f32 {t1}, {t1}, -{p[3]}, -{p[4]}")
    A(f"v_max3_f32 {t0}, {t0}, {p[5]}, {p[6]}")
    A(f"v_max3_f32 {t1}, {t1}, -{p[5]}, -{p[6]}")
    A(f"v_max_f32 {t0}, {t0}, {p[7]}")
    A(f"v_max_f32_e64 {t1}, {t1}, -{p[7]}")
    A("s_nop 1")
    A(f"v_permlane32_swap_b32 {t0}, {t1}")
    A("s_nop 0")
    A(f"v_max_f32 {t0}, {t0}, {t1}")
    A(f"v_mul_f32 {t0}, s{sC}, {t0}")
    A(f"v_mov_b32 {t1}, {t0}")
    A("s_nop 1")
    A(f"v_permlane32_swap_b32 {t0}, {t1}")
    A("s_nop 0")
    for i in range(8):
        A(f"v_fma_f32 {vr(E+i)}, {p[i]}, s{sC}, -{t0}")
        A(f"v_fma_f32 {vr(E+8+i)}, -{p[i]}, s{sC}, -{t1}")
    for i in range(16):
        A(f"v_exp_f32 {vr(E+i)}, {vr(E+i)}")
    A("s_nop 0")
    A(f"v_add_f32 {t0}, {vr(E)}, {vr(E+1)}")
    A(f"v_add_f32 {t1}, {vr(E+8)}, {vr(E+9)}")
    for i in range(2, 8):
        A(f"v_add_f32 {t0}, {t0}, {vr(E+i)}")
        A(f"v_add_f32 {t1}, {t1}, {vr(E+8+i)}")
    A("s_nop 1")
    A(f"v_permlane32_swap_b32 {t0}, {t1}")
    A("s_nop 0")
    A(f"v_add_f32 {t0}, {t0}, {t1}")
    A(f"v_rcp_f32 {t0}, {t0}")
    A("s_nop 0")
    A(f"v_mov_b32 {t1}, {t0}")
    A("s_nop 1")
    A(f"v_permlane32_swap_b32 {t0}, {t1}")
    A("s_nop 0")
    for i in range(8):
        A(f"v_mul_f32 {vr(E+i)}, {vr(E+i)}, {t0}")
        A(f"v_mul_f32 {vr(E+8+i)}, {vr(E+8+i)}, {t1}")
    for i in range(8):
        A(f"v_cvt_pk_bf16_f32 {vr(PH+i)}, {vr(E+2*i)}, {vr(E+2*i+1)}")

def gen_k1(A, label):
    sX, sWA, sWB, sPHI, sGW, sWS = 4, 6, 8, 10, 12, 14
    rX, rW0, rW1, rW2, rWS, rPHI, rGW = 16, 20, 24, 28, 32, 60, 64
    sWave, sRB, sG, sTY, sRT, sHP, sIt, sSt, sCur, sNxt = 36, 37, 38, 39, 40, 41, 42, 43, 44, 45
    sXo, sW0o, sW1o, sW2o, sT, sT2, sCT, sC, sScale = 46, 47, 48, 49, 50, 51, 52, 53, 54
    sM0x, sM0w = 55, 56
    sXs, sWs = 57, 58
    ACC = [0, 16, 32]
    XF = [48, 52]
    WF = [56, 68]
    vXb = 80
    vWb = 84
    vXa = 85
    vWa = 89
    vXs0, vXs1, vWs, vL = 90, 91, 92, 93
    vT = 94
    vWP = 100
    vWPF = 116
    vGX, vGW = 124, 128
    D2 = [132, 148]
    E = 164
    PH = [180, 188]
    KQ = [196, 200]
    VF = 204
    vOnes = 212
    NV = 216

    A.ws = f"s[{rWS}:{rWS+3}]"
    if not Opt.FUSED:
        kernel_begin(A, label)
        A(f"s_cmp_ge_u32 s2, 256")
        A(f"s_cbranch_scc1 {label}_end")
    stamp(A, 0)
    A(f"s_load_dwordx4 s[{sX}:{sX+3}], s[0:1], {KA_X}")
    A(f"s_load_dwordx4 s[{sWB}:{sWB+3}], s[0:1], {KA_WB}")
    A(f"s_load_dwordx2 s[{sGW}:{sGW+1}], s[0:1], {KA_GATE}")
    A(f"s_load_dwordx2 s[{sWS}:{sWS+1}], s[0:1], {KA_WS}")
    A(f"v_lshrrev_b32 v{vT}, 6, v0")
    A(f"v_and_b32 v{vL}, 63, v0")
    A("s_nop 0")
    A(f"v_readfirstlane_b32 s{sWave}, v{vT}")
    A(f"s_and_b32 s{sT}, s2, 7")
    A(f"s_lshr_b32 s{sT2}, s2, 3")
    A(f"s_and_b32 s{sRB}, s{sT}, 1")
    A(f"s_lshl_b32 s{sRB}, s{sRB}, 3")
    A(f"s_and_b32 s{sSt}, s{sT2}, 7")
    A(f"s_add_u32 s{sRB}, s{sRB}, s{sSt}")
    A(f"s_lshr_b32 s{sT2}, s{sT2}, 3")
    A(f"s_lshr_b32 s{sT}, s{sT}, 1")
    A(f"s_lshl_b32 s{sCT}, s{sT}, 2")
    A(f"s_add_u32 s{sCT}, s{sCT}, s{sT2}")
    A(f"s_lshl_b32 s{sT2}, s{sT2}, 1")
    A(f"s_add_u32 s{sSt}, s{sSt}, s{sT2}")
    A(f"s_and_b32 s{sSt}, s{sSt}, 7")
    A(f"s_lshr_b32 s{sG}, s{sCT}, 1")
    A(f"s_and_b32 s{sTY}, s{sCT}, 1")
    A(f"s_and_b32 s{sRT}, s{sWave}, 3")
    A(f"s_lshr_b32 s{sHP}, s{sWave}, 2")
    A(f"s_lshl_b32 s{sT}, s{sG}, 7")
    A(f"s_lshl_b32 s{sW0o}, s{sTY}, 10")
    A(f"s_add_u32 s{sW0o}, s{sW0o}, s{sT}")
    A(f"s_xor_b32 s{sW1o}, s{sTY}, 1")
    A(f"s_lshl_b32 s{sW1o}, s{sW1o}, 10")
    A(f"s_add_u32 s{sW1o}, s{sW1o}, s{sT}")
    A(f"s_add_u32 s{sW2o}, s{sT}, 2048")
    A(f"s_lshl_b32 s{sXo}, s{sRB}, 17")
    A(f"s_mov_b32 s{sC}, {f2u(LOG2E):#x}")
    A(f"s_cmp_eq_u32 s{sTY}, 0")
    A(f"s_cselect_b32 s{sScale}, {f2u(0.25*LOG2E):#x}, 1.0")
    A(f"v_lshrrev_b32 v{vT}, 3, v{vL}")
    A(f"s_lshl_b32 s{sT}, s{sWave}, 4")
    A(f"v_add_u32 v{vT+1}, s{sT}, v{vT}")
    A(f"v_lshlrev_b32 v{vT+1}, 10, v{vT+1}")
    A(f"v_lshrrev_b32 v{vT+2}, 4, v{vL}")
    A(f"v_and_b32 v{vT+3}, 7, v{vL}")
    A(f"v_xor_b32 v{vT+4}, v{vT+3}, v{vT+2}")
    A(f"v_lshl_add_u32 v{vXs0}, v{vT+4}, 4, v{vT+1}")
    A(f"v_xor_b32 v{vT+4}, 4, v{vT+4}")
    A(f"v_lshl_add_u32 v{vXs1}, v{vT+4}, 4, v{vT+1}")
    A(f"v_add_u32 v{vXs1}, {8192-1024}, v{vXs1}")
    A(f"s_lshl_b32 s{sT}, s{sWave}, 3")
    A(f"v_add_u32 v{vT+1}, s{sT}, v{vT}")
    A(f"s_movk_i32 s{sT}, 3072")
    A(f"v_mul_lo_u32 v{vT+1}, v{vT+1}, s{sT}")
    A(f"v_and_b32 v{vT+4}, 1, v{vT+2}")
    A(f"v_lshlrev_b32 v{vT+4}, 2, v{vT+4}")
    A(f"v_xor_b32 v{vT+4}, v{vT+3}, v{vT+4}")
    A(f"v_lshl_add_u32 v{vWs}, v{vT+4}, 4, v{vT+1}")
    A(f"v_and_b32 v{vT}, 31, v{vL}")
    A(f"v_lshrrev_b32 v{vT+1}, 5, v{vL}")
    A(f"v_bfe_u32 v{vT+2}, v{vL}, 1, 3")
    A(f"v_xor_b32 v{vT+2}, v{vT+2}, v{vT+1}")
    A(f"s_lshl_b32 s{sT}, s{sRT}, 12")
    A(f"v_lshl_add_u32 v{vT+3}, v{vT}, 7, s{sT}")
    for kk in range(4):
        A(f"v_xor_b32 v{vT+4}, {2*kk}, v{vT+2}")
        A(f"v_lshl_add_u32 v{vXb+kk}, v{vT+4}, 4, v{vT+3}")
    A(f"v_bfe_u32 v{vT+2}, v{vL}, 2, 2")
    A(f"v_lshl_add_u32 v{vT+2}, v{vT+1}, 3, v{vT+2}")
    A(f"v_lshlrev_b32 v{vT+2}, 7, v{vT+2}")
    A(f"v_bfe_u32 v{vT+3}, v{vL}, 3, 1")
    A(f"v_xor_b32 v{vT+3}, s{sHP}, v{vT+3}")
    A(f"v_lshl_add_u32 v{vT+2}, v{vT+3}, 6, v{vT+2}")
    A(f"v_bfe_u32 v{vT+3}, v{vL}, 4, 1")
    A(f"v_lshl_add_u32 v{vT+2}, v{vT+3}, 5, v{vT+2}")
    A(f"v_and_b32 v{vT+3}, 3, v{vL}")
    A(f"v_lshl_add_u32 v{vT+2}, v{vT+3}, 3, v{vT+2}")
    A(f"v_add_u32 v{vWb}, 16384, v{vT+2}")
    for i in range(48):
        A(f"v_mov_b32 v{i}, 0")
    stamp(A, 5)
    A("s_waitcnt lgkmcnt(0)")
    srd(A, rX, sX, 2 * MB)
    srd(A, rW0, sWA, 512 * 3072)
    srd(A, rW1, sWB, 512 * 3072)
    A(f"s_cmp_eq_u32 s{sTY}, 0")
    A(f"s_cselect_b32 s{rW2}, s{sWB}, s{sWA}")
    A(f"s_cselect_b32 s{rW2+1}, s{sWB+1}, s{sWA+1}")
    A(f"s_mov_b32 s{rW2+2}, {512*3072:#x}")
    A(f"s_mov_b32 s{rW2+3}, 0x00020000")
    srd(A, rWS, sWS, WS_END)
    srd(A, rPHI, sPHI, 32 * 512)
    srd(A, rGW, sGW, 1024)
    A(f"s_lshl_b32 s{sM0x}, s{sWave}, 11")
    A(f"s_lshl_b32 s{sM0w}, s{sWave}, 10")
    A(f"s_add_u32 s{sM0w}, s{sM0w}, 16384")

    def dma_stage(slot_sgpr_or_imm):
        so = slot_sgpr_or_imm
        A(f"s_add_u32 s{sT}, s{sM0x}, {so}")
        A(f"s_mov_b32 m0, s{sT}")
        A(f"s_add_u32 s{sT2}, s{sXo}, s{sXs}")
        A(f"buffer_load_dwordx4 v{vXs0}, s[{rX}:{rX+3}], s{sT2} offen lds")
        A(f"buffer_load_dwordx4 v{vXs1}, s[{rX}:{rX+3}], s{sT2} offen offset:1024 lds")
        A(f"s_add_u32 s{sT}, s{sM0w}, {so}")
        for cg, (r, o) in enumerate(((rW0, sW0o), (rW1, sW1o), (rW2, sW2o))):
            if cg:
                A(f"s_add_u32 s{sT}, s{sT}, 8192")
            A(f"s_mov_b32 m0, s{sT}")
            A(f"s_add_u32 s{sT2}, s{o}, s{sWs}")
            A(f"buffer_load_dwordx4 v{vWs}, s[{r}:{r+3}], s{sT2} offen lds")
    def stage_offsets():
        A(f"s_lshl_b32 s{sXs}, s{sSt}, 7")
        A(f"s_mul_i32 s{sWs}, s{sSt}, {64*3072}")
        A(f"s_add_u32 s{sSt}, s{sSt}, 1")
        A(f"s_and_b32 s{sSt}, s{sSt}, 7")

    stage_offsets(); dma_stage(0)
    stamp(A, 6)
    A(f"s_lshl_b32 s{sT}, s{sCT}, 3")
    A(f"s_add_u32 s{sT}, s{sT}, s{sWave}")
    A(f"s_lshl_b32 s{sT}, s{sT}, 10")
    A(f"s_add_u32 s{sT}, s{sT}, s{sXo}")
    A(f"v_lshlrev_b32 v{vT}, 4, v{vL}")
    A(f"buffer_load_dwordx4 v[{vGX}:{vGX+3}], v{vT}, s[{rX}:{rX+3}], s{sT} offen")
    A(f"buffer_load_dwordx4 v[{vGW}:{vGW+3}], v{vT}, s[{rGW}:{rGW+3}], 0 offen")
    A(f"v_and_b32 v{vT+2}, 15, v{vL}")
    A(f"v_lshlrev_b32 v{vT+2}, 1, v{vT+2}")
    A(f"v_lshl_add_u32 v{vT+2}, v{vT+1}, 7, v{vT+2}")
    A(f"s_lshl_b32 s{sT}, s{sG}, 2")
    A(f"s_lshl_b32 s{sT2}, s{sHP}, 1")
    A(f"s_add_u32 s{sT}, s{sT}, s{sT2}")
    A(f"s_lshl_b32 s{sT}, s{sT}, 9")
    for i in range(2):
        for j in range(8):
            A(f"buffer_load_ushort v{vWP+8*i+j}, v{vT+2}, s[{rPHI}:{rPHI+3}], s{sT} offen offset:{i*512 + (8*(j//4) + j%4)*32}")
    stamp(A, 7)
    stage_offsets(); dma_stage(SLOT)
    stage_offsets(); dma_stage(2 * SLOT)
    A(f"s_mov_b32 s{sIt}, 0")
    A(f"s_mov_b32 s{sCur}, 0")
    A(f"s_mov_b32 s{sNxt}, {SLOT}")

    def reads(kk, buf, xa, wa):
        A(f"ds_read_b128 v[{XF[buf]}:{XF[buf]+3}], v{xa+kk}")
        for cg in range(3):
            for u in range(2):
                A(f"ds_read_b64_tr_b16 v[{WF[buf]+4*cg+2*u}:{WF[buf]+4*cg+2*u+1}], v{wa} offset:{cg*8192 + kk*2048 + u*512}")
    def mfmas(buf):
        x = f"v[{XF[buf]}:{XF[buf]+3}]"
        for cg in range(3):
            w = f"v[{WF[buf]+4*cg}:{WF[buf]+4*cg+3}]"
            acc = f"v[{ACC[cg]}:{ACC[cg]+15}]"
            if cg < 2:
                A(f"v_mfma_f32_32x32x16_bf16 {acc}, {w}, {x}, {acc}")
            else:
                A(f"v_mfma_f32_32x32x16_bf16 {acc}, {x}, {w}, {acc}")

    for kk in range(4):
        A(f"v_mov_b32 v{vXa+kk}, v{vXb+kk}")
    A(f"v_mov_b32 v{vWa}, v{vWb}")
    stamp(A, 1)
    A("s_waitcnt vmcnt(28)")
    A("s_barrier")
    stamp(A, 2)
    reads(0, 0, vXa, vWa)
    A.raw(".p2align 4")
    A.label(f"{label}_loop")
    for kk in range(3):
        reads(kk + 1, (kk + 1) & 1, vXa, vWa)
        A("s_waitcnt lgkmcnt(7)")
        mfmas(kk & 1)
    A(f"s_cmp_lt_u32 s{sIt}, 5")
    stage_offsets_saved = None
    A(f"s_cselect_b32 s{sT}, 0, 0x40000000")
    A(f"s_lshl_b32 s{sXs}, s{sSt}, 7")
    A(f"s_mul_i32 s{sWs}, s{sSt}, {64*3072}")
    A(f"s_add_u32 s{sXs}, s{sXs}, s{sT}")
    A(f"s_add_u32 s{sWs}, s{sWs}, s{sT}")
    A(f"s_add_u32 s{sSt}, s{sSt}, 1")
    A(f"s_and_b32 s{sSt}, s{sSt}, 7")
    for kk in range(4):
        A(f"v_add_u32 v{vXa+kk}, s{sNxt}, v{vXb+kk}")
    A(f"v_add_u32 v{vWa}, s{sNxt}, v{vWb}")
    if Opt.STAMP:
        A(f"s_add_u32 s82, s{sIt}, 16")
        A(f"s_add_u32 s83, s{sIt}, 32")
        stamp(A, "s82")
    A("s_waitcnt vmcnt(5) lgkmcnt(0)")
    A("s_barrier")
    stamp(A, "s83")
    reads(0, 0, vXa, vWa)
    dma_stage(f"s{sCur}")
    mfmas(1)
    A(f"s_mov_b32 s{sCur}, s{sNxt}")
    A(f"s_add_u32 s{sNxt}, s{sNxt}, {SLOT}")
    A(f"s_cmp_eq_u32 s{sNxt}, {NSLOT*SLOT}")
    A(f"s_cselect_b32 s{sNxt}, 0, s{sNxt}")
    A(f"s_add_u32 s{sIt}, s{sIt}, 1")
    A(f"s_cmp_lt_u32 s{sIt}, 8")
    A(f"s_cbranch_scc1 {label}_loop")

    stamp(A, 3)
    A(f"v_dot2_f32_bf16 v{vT}, v{vGX}, v{vGW}, 0")
    A("s_nop 2")
    for i in range(1, 4):
        A(f"v_dot2_f32_bf16 v{vT}, v{vGX+i}, v{vGW+i}, v{vT}")
    A("s_nop 2")
    for rr in (8, 4, 2, 1):
        A(f"v_add_f32_dpp v{vT}, v{vT}, v{vT} row_ror:{rr} row_mask:0xf bank_mask:0xf")
        A("s_nop 1")
    A(f"v_mov_b32 v{vT+1}, v{vT}")
    A("s_nop 1")
    A(f"v_permlane16_swap_b32 v{vT}, v{vT+1}")
    A("s_nop 0")
    A(f"v_add_f32 v{vT}, v{vT}, v{vT+1}")
    A(f"v_mov_b32 v{vT+1}, v{vT}")
    A("s_nop 1")
    A(f"v_permlane32_swap_b32 v{vT}, v{vT+1}")
    A("s_nop 0")
    A(f"v_add_f32 v{vT}, v{vT}, v{vT+1}")
    A(f"v_mul_f32 v{vT}, s{sC}, v{vT}")
    A(f"v_exp_f32_e64 v{vT}, -v{vT}")
    A("s_nop 0")
    A(f"v_add_f32 v{vT}, 1.0, v{vT}")
    A(f"v_rcp_f32 v{vT}, v{vT}")
    A(f"s_lshl_b32 s{sT}, s{sRB}, 7")
    A(f"s_lshl_b32 s{sT2}, s{sCT}, 3")
    A(f"s_add_u32 s{sT}, s{sT}, s{sT2}")
    A(f"s_add_u32 s{sT}, s{sT}, s{sWave}")
    A(f"s_lshl_b32 s{sT}, s{sT}, 2")
    A(f"s_add_u32 s{sT}, s{sT}, {WS_G:#x}")
    A(f"v_mov_b32 v{vT+1}, 0")
    A(f"buffer_store_dword v{vT}, v{vT+1}, s[{rWS}:{rWS+3}], s{sT} offen")
    A("s_waitcnt lgkmcnt(0)")
    for i in range(8):
        A(f"v_lshl_or_b32 v{vWPF+i}, v{vWP+2*i+1}, 16, v{vWP+2*i}")
    for i in range(2):
        for j in range(4):
            A(f"v_cvt_pk_bf16_f32 v{KQ[i]+j}, v{ACC[1]+8*i+2*j}, v{ACC[1]+8*i+2*j+1}")
    A("s_nop 1")
    for i in range(2):
        A(f"v_mfma_f32_32x32x16_bf16 v[{D2[i]}:{D2[i]+15}], v[{vWPF+4*i}:{vWPF+4*i+3}], v[{KQ[i]}:{KQ[i]+3}], 0")
    for i in range(16):
        A(f"v_mul_f32 v{ACC[0]+i}, s{sScale}, v{ACC[0]+i}")
    for i in range(8):
        A(f"v_cvt_pk_bf16_f32 v{XF[0]+i}, v{ACC[0]+2*i}, v{ACC[0]+2*i+1}")
    A(f"v_and_b32 v{vT+1}, 0x33, v{vL}")
    A(f"v_bfe_u32 v{vT+2}, v{vL}, 2, 1")
    A(f"v_lshl_or_b32 v{vT+1}, v{vT+2}, 3, v{vT+1}")
    A(f"v_bfe_u32 v{vT+2}, v{vL}, 3, 1")
    A(f"v_lshl_or_b32 v{vT+1}, v{vT+2}, 2, v{vT+1}")
    A(f"s_cmp_eq_u32 s{sTY}, 0")
    A(f"s_cselect_b64 vcc, -1, 0")
    A(f"v_cndmask_b32 v{vT+1}, v{vT+1}, v{vL}, vcc")
    A(f"v_lshlrev_b32 v{vT+1}, 4, v{vT+1}")
    sHT = sXs
    A(f"s_lshl_b32 s{sT}, s{sG}, 2")
    A(f"s_lshl_b32 s{sT2}, s{sHP}, 1")
    A(f"s_add_u32 s{sT}, s{sT}, s{sT2}")
    A(f"s_lshl_b32 s{sHT}, s{sT}, 16")
    A(f"s_lshl_b32 s{sT}, s{sRB}, 2")
    A(f"s_add_u32 s{sT}, s{sT}, s{sRT}")
    A(f"s_lshl_b32 s{sT}, s{sT}, 10")
    A(f"s_add_u32 s{sHT}, s{sHT}, s{sT}")
    A(f"s_lshl_b32 s{sT}, s{sHT}, s{sTY}")
    A(f"s_mul_i32 s{sT2}, s{sTY}, {WS_K - WS_Q:#x}")
    A(f"s_add_u32 s{sT}, s{sT}, s{sT2}")
    A(f"s_lshl_b32 s{sT2}, 0x10000, s{sTY}")
    A(f"s_add_u32 s{sT2}, s{sT2}, s{sT}")
    A(f"buffer_store_dwordx4 v[{XF[0]}:{XF[0]+3}], v{vT+1}, s[{rWS}:{rWS+3}], s{sT} offen")
    A(f"buffer_store_dwordx4 v[{XF[1]}:{XF[1]+3}], v{vT+1}, s[{rWS}:{rWS+3}], s{sT2} offen")
    for i in range(8):
        A(f"v_cvt_pk_bf16_f32 v{VF+i}, v{ACC[2]+2*i}, v{ACC[2]+2*i+1}")
    for i in range(2):
        feature_map(A, D2[i], vT + 2, vT + 3, E, PH[i], sC)
    stamp(A, 4)
    A(f"s_cmp_eq_u32 s{sTY}, 0")
    A(f"s_cbranch_scc1 {label}_ty0")
    A(f"v_and_b32 v{vT+1}, 15, v{vL}")
    A(f"v_lshlrev_b32 v{vT+1}, 4, v{vT+1}")
    A(f"v_lshrrev_b32 v{vT+2}, 5, v{vL}")
    A(f"v_lshl_add_u32 v{vT+1}, v{vT+2}, 8, v{vT+1}")
    A(f"v_bfe_u32 v{vT+2}, v{vL}, 4, 1")
    A(f"v_lshl_add_u32 v{vT+1}, v{vT+2}, 17, v{vT+1}")
    A(f"s_lshl_b32 s{sT}, s{sHT}, 1")
    A(f"s_add_u32 s{sT}, s{sT}, {WS_K:#x}")
    A(f"buffer_store_dwordx4 v[{VF}:{VF+3}], v{vT+1}, s[{rWS}:{rWS+3}], s{sT} offen offset:1024")
    A(f"buffer_store_dwordx4 v[{VF+4}:{VF+7}], v{vT+1}, s[{rWS}:{rWS+3}], s{sT} offen offset:1536")
    A(f"s_lshl_b32 s{sT}, s{sHT}, 1")
    A(f"s_add_u32 s{sT}, s{sT}, {WS_PQ:#x}")
    A(f"s_add_u32 s{sT2}, s{sT}, 131072")
    A(f"v_lshlrev_b32 v{vT+1}, 4, v{vL}")
    A(f"buffer_store_dwordx4 v[{PH[0]}:{PH[0]+3}], v{vT+1}, s[{rWS}:{rWS+3}], s{sT} offen")
    A(f"buffer_store_dwordx4 v[{PH[0]+4}:{PH[0]+7}], v{vT+1}, s[{rWS}:{rWS+3}], s{sT} offen offset:1024")
    A(f"buffer_store_dwordx4 v[{PH[1]}:{PH[1]+3}], v{vT+1}, s[{rWS}:{rWS+3}], s{sT2} offen")
    A(f"buffer_store_dwordx4 v[{PH[1]+4}:{PH[1]+7}], v{vT+1}, s[{rWS}:{rWS+3}], s{sT2} offen offset:1024")
    A(f"s_branch {label}_fin")
    A.label(f"{label}_ty0")
    A("s_waitcnt vmcnt(0) lgkmcnt(0)")
    A("s_barrier")
    A(f"s_lshl_b32 s{sT}, s{sRT}, 2")
    A(f"s_lshl_b32 s{sT2}, s{sHP}, 1")
    A(f"s_add_u32 s{sT}, s{sT}, s{sT2}")
    A(f"s_mul_i32 s{sT2}, s{sT}, {32*PHI_RS}")
    A(f"v_and_b32 v{vT+1}, 31, v{vL}")
    A(f"v_mul_u32_u24 v{vT+1}, {PHI_RS}, v{vT+1}")
    A(f"v_lshrrev_b32 v{vT+2}, 5, v{vL}")
    A(f"v_lshl_add_u32 v{vT+1}, v{vT+2}, 3, v{vT+1}")
    A(f"v_add_u32 v{vT+1}, s{sT2}, v{vT+1}")
    for i in range(2):
        for q in range(4):
            A(f"ds_write_b64 v{vT+1}, v[{PH[i]+2*q}:{PH[i]+2*q+1}] offset:{PHI_REG + i*32*PHI_RS + q*16}")
    A(f"s_lshl_b32 s{sT2}, s{sT}, 11")
    A(f"v_and_b32 v{vT+1}, 15, v{vL}")
    A(f"v_lshlrev_b32 v{vT+1}, 4, v{vT+1}")
    A(f"v_lshl_add_u32 v{vT+1}, v{vT+2}, 9, v{vT+1}")
    A(f"v_bfe_u32 v{vT+3}, v{vL}, 4, 1")
    A(f"v_lshl_add_u32 v{vT+1}, v{vT+3}, 11, v{vT+1}")
    A(f"v_add_u32 v{vT+1}, s{sT2}, v{vT+1}")
    for i in range(4):
        A(f"v_mov_b32 v{vOnes+i}, 0x3f803f80")
    for grp in range(2):
        A(f"ds_write_b128 v{vT+1}, v[{VF+4*grp}:{VF+4*grp+3}] offset:{VB_REG + grp*1024}")
        A(f"ds_write_b128 v{vT+1}, v[{vOnes}:{vOnes+3}] offset:{VB_REG + grp*1024 + 256}")
    A("s_waitcnt lgkmcnt(0)")
    A("s_barrier")
    A(f"s_cmp_ge_u32 s{sWave}, 4")
    A(f"s_cbranch_scc1 {label}_fin")
    A(f"v_bfe_u32 v{vT+1}, v{vL}, 2, 2")
    A(f"v_lshl_add_u32 v{vT+1}, v{vT+2}, 2, v{vT+1}")
    A(f"s_lshl_b32 s{sT}, s{sWave}, 5")
    A(f"v_add_u32 v{vT+1}, s{sT}, v{vT+1}")
    A(f"v_mul_u32_u24 v{vT+1}, {PHI_RS}, v{vT+1}")
    A(f"v_lshl_add_u32 v{vT+1}, v{vT+3}, 5, v{vT+1}")
    A(f"v_and_b32 v{vT+4}, 3, v{vL}")
    A(f"v_lshl_add_u32 v{vT+1}, v{vT+4}, 3, v{vT+1}")
    A(f"s_lshl_b32 s{sT}, s{sWave}, 11")
    A(f"v_lshl_add_u32 v{vT+4}, v{vL}, 4, s{sT}")
    PB = 48
    PB = 132
    for rt in range(4):
        for m in range(2):
            b = PB + (rt * 2 + m) * 8
            for u in range(2):
                A(f"ds_read_b64_tr_b16 v[{b+2*u}:{b+2*u+1}], v{vT+1} offset:{PHI_REG + rt*4*32*PHI_RS + (16*m+8*u)*PHI_RS}")
            A(f"ds_read_b128 v[{b+4}:{b+7}], v{vT+4} offset:{VB_REG + rt*8192 + m*1024}")
        if rt % 2 == 1:
            A("s_waitcnt lgkmcnt(0)")
            for r2 in (rt - 1, rt):
                for m in range(2):
                    b = PB + (r2 * 2 + m) * 8
                    c = "0" if (r2 == 0 and m == 0) else "v[0:15]"
                    A(f"v_mfma_f32_32x32x16_bf16 v[0:15], v[{b}:{b+3}], v[{b+4}:{b+7}], {c}")
    A(f"s_lshl_b32 s{sT}, s{sG}, 2")
    A(f"s_add_u32 s{sT}, s{sT}, s{sWave}")
    A(f"s_lshl_b32 s{sT}, s{sT}, 4")
    A(f"s_add_u32 s{sT}, s{sT}, s{sRB}")
    A(f"s_lshl_b32 s{sT}, s{sT}, 12")
    A(f"s_add_u32 s{sT}, s{sT}, {WS_KV:#x}")
    A(f"v_lshlrev_b32 v{vT+1}, 3, v{vL}")
    A("s_nop 15")
    for p in range(8):
        A(f"buffer_store_dwordx2 v[{2*p}:{2*p+1}], v{vT+1}, s[{rWS}:{rWS+3}], s{sT} offen offset:{p*512}")
    A.label(f"{label}_fin")
    stamp_end(A, 0, rWS, sWave)
    if not Opt.FUSED:
        A.label(f"{label}_end")
        A("s_endpgm")
    return NV
```

```python
import sys
sys.path.insert(0, "gen")
from fy_common import *
import fy1 as fz1
import fy2 as fz2

def build(path, upto=3):
    Opt.FUSED = True
    A = Asm()
    A.ws = RWS
    L = "fz_kernel"
    kernel_begin(A, L)
    fz1.prologue(A, L)
    fz1.loader(A, L)
    if upto == 1:
        A(f"s_branch {L}_cdone")
        fz1.compute(A, L)
        stamp_end(A, 0, rWS, sWave)
    else:
        fz2.gen(A, L, upto)
    A.label(f"{L}_exit")
    A("s_endpgm")
    for t in A.tails:
        A.lines += t
    out = HEADER
    out += f"; @launch kernel={L} grid=(256,1,1) block=(512,1,1) lds={LDS_TOTAL}\n"
    out += '.amdgcn_target "amdgcn-amd-amdhsa--gfx950"\n.text\n'
    out += A.text()
    out += '.section .rodata,"a"\n'
    out += kernel_desc(L, 256, 102)
    open(path, "w").write(out)

if __name__ == "__main__":
    upto = 3
    Opt.PLAIN = True
    for a in list(sys.argv[1:]):
        if a == "--stamp":
            Opt.STAMP = True; sys.argv.remove(a)
        elif a == "--sc1":
            Opt.PLAIN = False; sys.argv.remove(a)
        elif a.startswith("--upto="):
            upto = int(a[7:]); sys.argv.remove(a)
        elif a.startswith("--p1:") or a.startswith("--p2:"):
            k, v = a[5:].split("=")
            setattr(fz1.P1Opt if a[3] == "1" else fz2.P2Opt, k, eval(v)); sys.argv.remove(a)
    build(sys.argv[1], upto)
```

```python
from fx_common import *
from k1 import feature_map

class P1Opt:
    ROT = 1
    PFS = 0
    PFS_AT = 0
    PUBSTEP = 9
    ISSUE = {0: [2], 1: [3], 2: [4], 3: [5], 4: [6], 5: [7], 6: [8], 7: [9], 8: [10], 9: [11]}
    SENT = 23
    WOLD = 0
    WOST = 7
    CNT = 22
    CPF = 0
    LDSTAMP = True
    CST = {6: 56, 14: 57, 22: 58, 23: 59}
    NOGATE = 0
    WEXP = 0
    PFV = None
    PFM = 0
    MAP = 0
    NOCNT = 0

def decode_rest(A):
    A(f"s_and_b32 s{sT2}, s{sWave}, 3")
    A(f"s_lshl_b32 s{sTB}, s{sRB}, 2")
    A(f"s_add_u32 s{sTB}, s{sTB}, s{sT2}")
    A(f"s_lshr_b32 s{sT}, s{sWave}, 2")
    A(f"s_lshl_b32 s{sHB}, s{sCT}, 1")
    A(f"s_add_u32 s{sT3}, s{sHB}, s{sWave}")
    A(f"s_add_u32 s{sHB}, s{sHB}, s{sT}")
    A(f"s_lshl_b32 s{sF1}, s{sCT}, 6")
    A(f"s_add_u32 s{sF1}, s{sF1}, s{sTB}")
    A(f"s_lshl_b32 s{sF1}, s{sF1}, 6")
    A(f"s_add_u32 s{sF1}, s{sF1}, {F1:#x}")
    A(f"s_lshl_b32 s{sF1L}, s{sT3}, 4")
    A(f"s_add_u32 s{sF1L}, s{sF1L}, s{sRB}")
    A(f"s_lshl_b32 s{sF1L}, s{sF1L}, 6")
    A(f"s_add_u32 s{sF1L}, s{sF1L}, {F1L:#x}")
    A(f"s_lshl_b32 s{sF2}, s{sTB}, 5")
    A(f"s_add_u32 s{sF2}, s{sF2}, s{sHB}")
    A(f"s_lshl_b32 s{sF2}, s{sF2}, 6")
    A(f"s_add_u32 s{sF2}, s{sF2}, {F2:#x}")
    A(f"s_and_b32 s{sT}, s2, 7")
    A(f"s_lshl_b32 s{sT}, s{sT}, 2")
    A(f"s_bfe_u32 s{sT2}, s2, 0x20003")
    A(f"s_add_u32 s{sHead}, s{sT}, s{sT2}")
    A(f"s_lshr_b32 s{sQB}, s2, 5")
    A(f"s_lshl_b32 s{sT}, s{sQB}, 3")
    A(f"s_add_u32 s{sT}, s{sT}, s{sWave}")
    A(f"s_lshl_b32 s{sOo}, s{sT}, 6")
    A(f"s_add_u32 s{sOo}, s{sOo}, s{sHead}")
    A(f"s_lshl_b32 s{sOo}, s{sOo}, 10")
    A(f"s_add_u32 s{sOo}, s{sOo}, {WS_O:#x}")
    A(f"s_lshl_b32 s{sT}, s{sT}, 5")
    A(f"s_add_u32 s{sT}, s{sT}, s{sHead}")
    A(f"s_lshl_b32 s{sT}, s{sT}, 6")
    A(f"s_add_u32 s{sF3}, s{sT}, {F3:#x}")
    A(f"s_mov_b32 s{sC}, {f2u(LOG2E):#x}")

def prologue(A, L):
    A("s_cmp_ge_u32 s2, 256")
    A(f"s_cbranch_scc1 {L}_exit")
    A(f"s_load_dwordx16 s[4:19], s[0:1], 0")
    A(f"s_load_dwordx4 s[20:23], s[0:1], 64")
    A(f"s_load_dwordx2 s[24:25], s[0:1], 80")
    A(f"v_lshrrev_b32 v1, 6, v0")
    A(f"v_and_b32 v{vL}, 63, v0")
    A(f"v_lshlrev_b32 v{vL16}, 4, v{vL}")
    A(f"v_readfirstlane_b32 s{sWave}, v1")
    if P1Opt.MAP == 0:
        A(f"s_and_b32 s{sRB}, s2, 1")
        A(f"s_lshl_b32 s{sRB}, s{sRB}, 3")
        A(f"s_bfe_u32 s{sSt}, s2, 0x30003")
        A(f"s_add_u32 s{sRB}, s{sRB}, s{sSt}")
        A(f"s_lshr_b32 s{sT2}, s2, 6")
        A(f"s_bfe_u32 s{sT}, s2, 0x20001")
        A(f"s_lshl_b32 s{sCT}, s{sT}, 2")
        A(f"s_add_u32 s{sCT}, s{sCT}, s{sT2}")
        A(f"s_lshl_b32 s{sT2}, s{sT2}, 1")
    elif P1Opt.MAP in (1, 2):
        A(f"s_and_b32 s{sRB}, s2, 3")
        A(f"s_lshl_b32 s{sRB}, s{sRB}, 2")
        A(f"s_bfe_u32 s{sT2}, s2, 0x20003")
        A(f"s_add_u32 s{sRB}, s{sRB}, s{sT2}")
        A(f"s_lshr_b32 s{sSt}, s2, 5")
        A(f"s_and_b32 s{sT}, s2, 4")
        if P1Opt.MAP == 1:
            A(f"s_lshl_b32 s{sCT}, s{sT}, 1")
            A(f"s_add_u32 s{sCT}, s{sCT}, s{sSt}")
        else:
            A(f"s_lshr_b32 s{sCT}, s{sT}, 1")
            A(f"s_and_b32 s{sT}, s{sSt}, 6")
            A(f"s_add_u32 s{sCT}, s{sCT}, s{sT}")
            A(f"s_add_u32 s{sCT}, s{sCT}, s{sSt}")
        A(f"s_lshl_b32 s{sT2}, s{sT2}, 1")
    else:
        A(f"s_and_b32 s{sRB}, s2, 7")
        A(f"s_lshl_b32 s{sRB}, s{sRB}, 1")
        A(f"s_bfe_u32 s{sT2}, s2, 0x10003")
        A(f"s_add_u32 s{sRB}, s{sRB}, s{sT2}")
        A(f"s_lshr_b32 s{sCT}, s2, 4")
        A(f"s_lshr_b32 s{sSt}, s2, 5")
        A(f"s_bfe_u32 s{sT2}, s2, 0x20003")
        A(f"s_lshl_b32 s{sT2}, s{sT2}, 1")
    A(f"s_add_u32 s{sSt}, s{sSt}, s{sT2}")
    A(f"s_and_b32 s{sSt}, s{sSt}, 7")
    A(f"s_cmp_lt_u32 s{sWave}, 4")
    A(f"s_cbranch_scc1 {L}_comp")

def qx_addr(A, v, sW):
    A(f"s_and_b32 s{sT}, s{sW}, 1")
    A(f"s_lshl_b32 s{sT}, s{sT}, 11")
    A(f"s_lshr_b32 s{sT2}, s{sW}, 1")
    A(f"s_mul_i32 s{sT2}, s{sT2}, {SLOT}")
    A(f"s_add_u32 s{sT}, s{sT}, s{sT2}")
    A(f"s_add_u32 s{sT}, s{sT}, {L_QX}")
    A(f"v_add_u32 v{v}, s{sT}, v{vL16}")
    A(f"v_and_b32 v{v+1}, 31, v{vL}")
    A(f"s_lshl_b32 s{sT}, s{sW}, 7")
    A(f"v_lshlrev_b32 v{v+1}, 2, v{v+1}")
    A(f"v_add_u32 v{v+1}, s{sT}, v{v+1}")

def loader(A, L):
    sJ, sXo, sMX, sMW, sA, sB, sWc = S0, S0 + 1, S0 + 2, S0 + 3, S0 + 4, S0 + 5, S0 + 6
    sPF, sSpin, sFp = 84, 87, 88
    vXs, vWs, vT = 2, 6, 8
    vD, vDa, vF, vFa, vQx, ON = 60, 61, 62, 63, 64, 68
    lst = lambda s: stamp(A, s) if P1Opt.LDSTAMP else None
    A(f"s_sub_u32 s{sJ}, s{sWave}, 4")
    A(f"v_lshrrev_b32 v{vT}, 3, v{vL}")
    A(f"s_lshl_b32 s{sT}, s{sJ}, 5")
    A(f"v_add_u32 v{vT+1}, s{sT}, v{vT}")
    A(f"v_lshlrev_b32 v{vT+1}, 10, v{vT+1}")
    A(f"v_lshrrev_b32 v{vT+2}, 4, v{vL}")
    A(f"v_and_b32 v{vT+3}, 7, v{vL}")
    A(f"v_xor_b32 v{vT+4}, v{vT+3}, v{vT+2}")
    A(f"v_lshl_add_u32 v{vXs}, v{vT+4}, 4, v{vT+1}")
    A(f"v_xor_b32 v{vT+4}, 4, v{vT+4}")
    A(f"v_lshl_add_u32 v{vXs+1}, v{vT+4}, 4, v{vT+1}")
    A(f"v_add_u32 v{vXs+1}, {7168}, v{vXs+1}")
    A(f"v_add_u32 v{vXs+2}, {2*7168}, v{vXs}")
    A(f"v_add_u32 v{vXs+3}, {2*7168}, v{vXs+1}")
    A(f"s_lshl_b32 s{sT}, s{sJ}, 4")
    A(f"v_lshrrev_b32 v{vT}, 2, v{vL}")
    A(f"v_add_u32 v{vT+1}, s{sT}, v{vT}")
    A(f"v_mul_u32_u24 v{vT+1}, 3072, v{vT+1}")
    A(f"v_and_b32 v{vT+3}, 3, v{vL}")
    A(f"v_lshl_add_u32 v{vWs}, v{vT+3}, 4, v{vT+1}")
    A(f"s_lshl_b32 s{sWc}, s{sCT}, 6")
    if P1Opt.WEXP:
        A(f"s_and_b32 s{sT2}, s{sCT}, 1")
        A(f"s_lshl_b32 s{sT2}, s{sT2}, 3")
        A(f"s_add_u32 s{sT}, s{sT}, s{sT2}")
        A(f"v_lshrrev_b32 v{vT}, 3, v{vL}")
        A(f"v_add_u32 v{vT+1}, s{sT}, v{vT}")
        A(f"v_mul_u32_u24 v{vT+1}, 3072, v{vT+1}")
        A(f"v_and_b32 v{vT+3}, 7, v{vL}")
        A(f"v_lshl_add_u32 v{vWs}, v{vT+3}, 4, v{vT+1}")
        A(f"s_and_b32 s{sWc}, s{sWc}, 0xff80")
    A(f"s_lshl_b32 s{sXo}, s{sRB}, 17")
    A(f"s_lshl_b32 s{sMX}, s{sJ}, 12")
    A(f"s_mul_i32 s{sMW}, s{sJ}, 3072")
    A(f"s_mov_b32 s{rX+2}, {2*MB:#x}")
    A(f"s_mov_b32 s{rX+3}, 0x00020000")
    for r in (rW0, rW1):
        A(f"s_mov_b32 s{r+2}, {512*3072:#x}")
        A(f"s_mov_b32 s{r+3}, 0x00020000")
    A("s_waitcnt lgkmcnt(0)")
    A(f"s_mov_b64 s[{rX}:{rX+1}], s[{pX}:{pX+1}]")
    A(f"s_mov_b64 s[{rW0}:{rW0+1}], s[{pWA}:{pWA+1}]")
    A(f"s_mov_b64 s[{rW1}:{rW1+1}], s[{pWB}:{pWB+1}]")
    stamp(A, 0)
    VM = Track(A, "vmcnt", 63)

    def wpart(r, ldsoff, tag):
        A(f"s_mul_i32 s{sB}, s{sSt}, {64*3072}")
        A(f"s_add_u32 m0, s{sMW}, {ldsoff}")
        A(f"s_add_u32 s{sB}, s{sB}, s{sWc}")
        for m in range(3):
            VM(f"buffer_load_dwordx4 v{vWs}, {R(r)}, s{sB} offen offset:{m*1024} lds", tag)
        A(f"s_add_u32 s{sSt}, s{sSt}, 1")
        A(f"s_and_b32 s{sSt}, s{sSt}, 7")
    def unit(u):
        if u < 8:
            A(f"s_lshl_b32 s{sA}, s{sSt}, 7")
            A(f"s_add_u32 m0, s{sMX}, {A_SLOT[u]}")
            A(f"s_add_u32 s{sA}, s{sA}, s{sXo}")
            for a in range(4):
                VM(f"buffer_load_dwordx4 v{vXs+a}, {R(rX)}, s{sA} offen offset:{a*1024} lds", u)
            wpart(rW0, A_SLOT[u] + 16384, u)
        else:
            for h in range(2):
                wpart(rW1, B_SLOT[u - 8] + h * 12288, u)
    unit(0); lst(1)
    unit(1); lst(2)
    decode_rest(A)
    srd(A, rWS, pWS, FZ_END)
    if P1Opt.PFS:
        A(f"s_and_b32 s{sT}, s{sRB}, 7")
        A(f"s_lshl_b32 s{sT}, s{sT}, 1")
        A(f"s_and_b32 s{sT2}, s{sCT}, 1")
        A(f"s_add_u32 s{sT}, s{sT}, s{sT2}")
        A(f"s_lshl_b32 s{sT}, s{sT}, 2")
        A(f"s_add_u32 s{sT}, s{sT}, s{sJ}")
        A(f"s_mul_i32 s{sT}, s{sT}, {8*3072}")
        A(f"s_lshr_b32 s{sT2}, s{sCT}, 1")
        A(f"s_lshl_b32 s{sT2}, s{sT2}, 7")
        A(f"s_add_u32 s{sT}, s{sT}, s{sT2}")
        A(f"s_add_u32 s{sPF}, s{pWB}, s{sT}")
        A(f"s_addc_u32 s{sPF+1}, s{pWB+1}, 0")
    srd(A, rM, pDBG, 256)
    A(f"v_and_b32 v{vDa}, 3, v{vL}")
    A(f"v_lshlrev_b32 v{vDa}, 6, v{vDa}")
    A(f"v_bfe_u32 v{vFa}, v{vL}, 2, 2")
    A(f"v_and_b32 v{vF}, 3, v{vL}")
    A(f"v_lshl_add_u32 v{vFa}, v{vFa}, 4, v{vF}")
    A(f"v_lshlrev_b32 v{vFa}, 6, v{vFa}")
    A(f"s_lshr_b32 s{sFp}, s{sHead}, 1")
    A(f"s_lshl_b32 s{sFp}, s{sFp}, 4")
    A(f"s_add_u32 s{sFp}, s{sFp}, s{sJ}")
    A(f"s_lshl_b32 s{sFp}, s{sFp}, 8")
    A(f"s_add_u32 s{sFp}, s{sFp}, {F1:#x}")
    A(f"s_mov_b32 s{sSpin}, {SPIN:#x}")
    qx_addr(A, vQx, sJ)
    A(f"v_max_u32 v{vT}, {POS0}, v{vL}")
    A(f"v_mul_u32_u24 v{vT}, {TS}, v{vT}")
    A(f"v_add_u32 v{vQx+2}, {KVBASE + 2048}, v{vT}")
    for i in range(4):
        A(f"v_mov_b32 v{ON+i}, 0x3f803f80")
    pfl = [n * 1024 + h * 64 for n in range(24) for h in range(P1Opt.PFS)]
    for i in range(12):
        VM.wait(i)
        quiet = P1Opt.PFS and P1Opt.PFS_AT < i <= P1Opt.PFS_AT + 5
        if not quiet: lst(16 + i)
        A("s_barrier")
        if not quiet: lst(28 + i)
        for u in P1Opt.ISSUE.get(i, []):
            unit(u)
        if i >= P1Opt.PFS_AT:
            for off in pfl[:12]:
                A(f"s_load_dword s99, s[{sPF}:{sPF+1}], {off:#x}")
            pfl = pfl[12:]
        if i == 9:
            VM(f"buffer_load_dword v{vD}, v{vDa}, {R(rM)}, 0 offen sc1", "dbg")
            A(f"s_lshl_b32 s{sB}, s{sHead}, 17")
            A(f"s_lshl_b32 s{sT}, s{sJ}, 13")
            A(f"s_add_u32 s{sB}, s{sB}, s{sT}")
            A(f"s_add_u32 s{sB}, s{sB}, {WS_K:#x}")
            A(f"s_mul_i32 s{sMW}, s{sJ}, {10*TS}")
        if i == 10:
            A("s_waitcnt vmcnt(0)")
            A(f"v_cmp_ne_u32 vcc, 64, v{vD}")
            if not P1Opt.NOCNT: A(f"s_cbranch_vccnz {L}_dspin")
            A.label(f"{L}_dok")
            A.tails.append([f"{L}_dspin:",
                            f"    buffer_load_dword v{vD}, v{vDa}, {R(rM)}, 0 offen sc1",
                            f"    s_sub_u32 s{sSpin}, s{sSpin}, 1",
                            f"    s_cbranch_scc1 {L}_dok",
                            "    s_waitcnt vmcnt(0)",
                            f"    v_cmp_ne_u32 vcc, 64, v{vD}",
                            f"    s_cbranch_vccnz {L}_dspin",
                            f"    s_branch {L}_dok"])
            lst(3)
    A.label(f"{L}_fspin")
    A(f"buffer_load_dword v{vF}, v{vFa}, {RWS}, s{sFp} offen sc1")
    A(f"ds_write_b128 v{vQx+2}, v[{ON}:{ON+3}]")
    A(f"s_sub_u32 s{sSpin}, s{sSpin}, 1")
    A(f"s_cbranch_scc1 {L}_fok")
    A("s_waitcnt vmcnt(0)")
    A(f"v_cmp_ne_u32 vcc, 1, v{vF}")
    A(f"s_cbranch_vccnz {L}_fspin")
    A.label(f"{L}_fok")
    lst(4)
    for n in range(10):
        A(f"s_add_u32 m0, s{sMW}, {KVBASE + (POS0 + n)*TS}")
        A(f"s_add_u32 s{sA}, s{sB}, {(16*(n//4) + n%4)*2048}")
        A(f"buffer_load_dwordx4 v{vL16}, {RWS}, s{sA} offen lds")
        A(f"buffer_load_dwordx4 v{vL16}, {RWS}, s{sA} offen offset:1024 lds")
    A("s_waitcnt lgkmcnt(0)")
    lst(5)
    A("s_barrier")
    lst(6)
    A(f"ds_read_b128 v[{cKQ}:{cKQ+3}], v{vQx}")
    A(f"ds_read_b128 v[{cKQ+4}:{cKQ+7}], v{vQx} offset:1024")
    A(f"ds_read_b32 v{vGB}, v{vQx+1} offset:{L_GX}")

def compute(A, L):
    sQo, sKo, sGo, sWst, sWs, sCn = S0, S0 + 2, S0 + 4, S0 + 5, S0 + 6, S0 + 7
    sSc, sPC = 84, 86
    XR, ACC, WF = 0, [128, 144, 160], [176, 188, 200]
    vXa, vWa, vKp, vVo, vGa = 212, 216, 217, 218, 219
    PK = 220
    GW, GA = [220, 224], 228
    vT = 220
    WOF, vWr, SE, vWo = 228, 232, 124, 233
    vOne, vT2 = 246, 244
    P = P1Opt
    A.label(f"{L}_comp")
    if P.CPF:
        A(f"s_getpc_b64 s[{sPC}:{sPC+1}]")
    decode_rest(A)
    A(f"s_mov_b32 s{sSc}, {f2u(0.25*LOG2E):#x}")
    A(f"s_mov_b32 s{sSc+1}, s{sSc}")
    A(f"v_lshlrev_b32 v{vT}, 6, v{vL}")
    A(f"v_add_u32 v{vT}, s{sF1}, v{vT}")
    A(f"v_and_b32 v{vT+2}, 1, v{vL}")
    A(f"v_lshlrev_b32 v{vT+2}, 10, v{vT+2}")
    A(f"v_add_u32 v{vT+2}, s{sF1L}, v{vT+2}")
    A(f"v_cmp_gt_u32 vcc, 4, v{vL}")
    A(f"v_and_b32 v{vT+3}, 3, v{vL}")
    A(f"v_bfe_u32 v{vT+4}, v{vL}, 2, 1")
    A(f"v_cndmask_b32 v{vT}, v{vT+2}, v{vT}, vcc")
    A(f"v_lshlrev_b32 v{vT+3}, 11, v{vT+3}")
    A(f"v_lshl_add_u32 v{vT+3}, v{vT+4}, 6, v{vT+3}")
    A(f"v_cmp_gt_u32 vcc, 8, v{vL}")
    A(f"v_add_u32 v{vT+3}, s{sF2}, v{vT+3}")
    A(f"v_and_b32 v{vT+4}, 7, v{vL}")
    A(f"v_cndmask_b32 v{vT}, v{vT+3}, v{vT}, vcc")
    A(f"v_lshlrev_b32 v{vT+4}, 11, v{vT+4}")
    A(f"v_cmp_gt_u32 vcc, 16, v{vL}")
    A(f"v_add_u32 v{vT+4}, s{sF3}, v{vT+4}")
    A(f"v_mov_b32 v{vT+1}, 0")
    A(f"v_cndmask_b32 v{vT}, v{vT+4}, v{vT}, vcc")
    A(f"v_lshrrev_b32 v{vWo}, 2, v{vL}")
    A(f"v_lshlrev_b32 v{vWo}, 10, v{vWo}")
    A(f"v_and_b32 v{vT+2}, 3, v{vL}")
    A(f"v_lshl_add_u32 v{vWo}, v{vT+2}, 4, v{vWo}")
    A(f"s_lshr_b32 s{sT2}, s{sWave}, 1")
    A(f"s_lshl_b32 s{sT3}, s{sRB}, 1")
    A(f"s_add_u32 s{sT3}, s{sT3}, s{sT2}")
    A(f"s_lshl_b32 s{sWs}, s{sT3}, 14")
    A(f"s_lshl_b32 s{sT2}, s{sCT}, 6")
    A(f"s_add_u32 s{sWs}, s{sWs}, s{sT2}")
    A(f"s_add_u32 s{sT3}, s{sT3}, s{sT2}")
    A(f"s_and_b32 s{sT}, s{sWave}, 1")
    A(f"s_lshl_b32 s{sT2}, s{sT}, 5")
    A(f"s_add_u32 s{sT3}, s{sT3}, s{sT2}")
    A(f"s_lshl_b32 s{sT3}, s{sT3}, 10")
    A(f"s_add_u32 s{sWst}, s{sT3}, {WS_WO:#x}")
    for i in range(4):
        A(f"v_mov_b32 v{SE+i}, -1")
    A(f"s_mov_b32 s{rM2+2}, {512*1024:#x}")
    A(f"s_mov_b32 s{rM2+3}, 0x00020000")
    A(f"s_cmp_eq_u32 s{sT}, 0")
    A("s_waitcnt lgkmcnt(0)")
    A(f"s_cselect_b64 s[{rM2}:{rM2+1}], s[{pWOA}:{pWOA+1}], s[{pWOB}:{pWOB+1}]")
    stamp(A, 0)
    srd(A, rWS, pWS, FZ_END)
    A(f"s_cmp_lg_u32 s{sWave}, 0")
    A(f"s_cbranch_scc1 {L}_norst")
    A("s_mov_b64 exec, 0xffff3f")
    A(f"buffer_store_dword v{vT+1}, v{vT}, {RWS}, 0 offen")
    if P.CPF:
        n = P.CPF // 128
        A(f"s_mov_b64 exec, {(1 << n) - 1:#x}")
        A(f"s_lshr_b32 s{sT}, s2, 3")
        A(f"s_mul_i32 s{sT}, s{sT}, {P.CPF}")
        A(f"v_lshlrev_b32 v{vT+2}, 7, v{vL}")
        A(f"v_add_u32 v{vT+2}, s{sT}, v{vT+2}")
        A(f"v_min_u32 v{vT+2}, {L}_last - {L}_comp - 8, v{vT+2}")
        A(f"global_load_dword v{vT2+1}, v{vT+2}, s[{sPC}:{sPC+1}]")
    A("s_mov_b64 exec, -1")
    A.label(f"{L}_norst")

    def small_loads():
        A(f"s_lshl_b32 s{sT}, s{sWave}, 10")
        A(f"s_add_u32 m0, s{sT}, {L_WOS}")
        srd(A, rM, pGATE, 32 * 512)
        A(f"buffer_load_dwordx4 v{vWo}, {R(rM2)}, s{sWs} offen lds")
        A(f"s_add_u32 s{sT}, s{sT}, {L_GW}")
        A(f"s_lshl_b32 s{sT2}, s{sCT}, 10")
        A(f"s_cmp_lt_u32 s{sWave}, 2")
        A(f"s_cselect_b32 m0, s{sT}, {L_WPHI}")
        A(f"s_cselect_b32 s{sT2}, 0, s{sT2}")
        A(f"s_cselect_b32 s{rM+2}, 1024, s{rM+2}")
        A(f"s_cselect_b64 s[{rM}:{rM+1}], s[{pGATE}:{pGATE+1}], s[{pPHI}:{pPHI+1}]")
        A(f"buffer_load_dwordx4 v{vL16}, {R(rM)}, s{sT2} offen lds")
    def sentinel():
        A(f"s_lshl_b32 s{sT}, s{sTB}, 6")
        A(f"s_add_u32 s{sT}, s{sT}, s{sHB}")
        A(f"s_lshl_b32 s{sT}, s{sT}, 10")
        A(f"s_add_u32 s{sT}, s{sT}, {WS_O:#x}")
        for h in range(2):
            A(f"buffer_store_dwordx4 v[{SE}:{SE+3}], v{vL16}, {RWS}, s{sT} offen offset:{h*1024}")
    def pfv():
        srd(A, rW1, pWB, 512 * 3072)
        if P.PFM == 0:
            A(f"s_lshl_b32 s{sT}, s2, 2")
            A(f"s_add_u32 s{sT}, s{sT}, s{sWave}")
            A(f"s_mul_i32 s{sT}, s{sT}, 1536")
            A(f"v_lshlrev_b32 v248, 7, v{vL}")
            A("s_mov_b64 exec, 0xfff")
        else:
            A(f"s_and_b32 s{sT}, s{sRB}, 7")
            A(f"s_lshl_b32 s{sT}, s{sT}, 1")
            A(f"s_and_b32 s{sT2}, s{sCT}, 1")
            A(f"s_add_u32 s{sT}, s{sT}, s{sT2}")
            A(f"s_lshl_b32 s{sT}, s{sT}, 2")
            A(f"s_add_u32 s{sT}, s{sT}, s{sWave}")
            A(f"s_mul_i32 s{sT}, s{sT}, {8*3072}")
            A(f"s_lshr_b32 s{sT2}, s{sCT}, 1")
            A(f"s_lshl_b32 s{sT2}, s{sT2}, 7")
            A(f"s_add_u32 s{sT}, s{sT}, s{sT2}")
            A(f"v_lshlrev_b32 v248, 10, v{vL}")
            A("s_mov_b64 exec, 0xffffff")
        A(f"buffer_load_dword v249, v248, {R(rW1)}, s{sT} offen")
        A("s_mov_b64 exec, -1")
    if P.PFV == -1: pfv()
    if P.WOLD < 0: small_loads()
    if P.SENT < 0: sentinel()
    A(f"v_and_b32 v{vT}, 31, v{vL}")
    A(f"v_lshrrev_b32 v{vT+1}, 5, v{vL}")
    A(f"v_bfe_u32 v{vT+2}, v{vL}, 1, 3")
    A(f"v_xor_b32 v{vT+2}, v{vT+2}, v{vT+1}")
    A(f"s_lshl_b32 s{sT}, s{sWave}, 12")
    A(f"s_add_u32 s{sT}, s{sT}, {A_SLOT[0]}")
    A(f"v_lshl_add_u32 v{vT+3}, v{vT}, 7, s{sT}")
    for kk in range(4):
        A(f"v_xor_b32 v{vT+4}, {2*kk}, v{vT+2}")
        A(f"v_lshl_add_u32 v{vXa+kk}, v{vT+4}, 4, v{vT+3}")
    A(f"s_lshl_b32 s{sT}, s{sSt}, 7")
    A(f"s_add_u32 s{sT}, s{sT}, {L_GW}")
    A(f"v_lshl_add_u32 v{vGa}, v{vT+1}, 4, s{sT}")
    A(f"v_bfe_u32 v{vT+2}, v{vL}, 2, 2")
    A(f"v_lshlrev_b32 v{vT+2}, 6, v{vT+2}")
    A(f"v_bfe_u32 v{vT+3}, v{vL}, 4, 1")
    A(f"v_lshl_add_u32 v{vT+2}, v{vT+3}, 5, v{vT+2}")
    A(f"v_and_b32 v{vT+4}, 3, v{vL}")
    A(f"v_lshl_add_u32 v{vT+2}, v{vT+4}, 3, v{vT+2}")
    A(f"v_lshl_add_u32 v{vWr}, v{vT+1}, 8, v{vT+2}")
    A(f"v_lshl_add_u32 v{vT+2}, v{vT+1}, 9, v{vT+2}")
    A(f"v_add_u32 v{vWa}, {A_SLOT[0] + 16384}, v{vT+2}")
    A(f"s_lshl_b32 s{sT}, s{sWave}, 10")
    A(f"v_add_u32 v{vWr}, s{sT}, v{vWr}")
    A(f"v_and_b32 v{vKp}, 0x33, v{vL}")
    A(f"v_bfe_u32 v{vT+2}, v{vL}, 2, 1")
    A(f"v_lshl_or_b32 v{vKp}, v{vT+2}, 3, v{vKp}")
    A(f"v_bfe_u32 v{vT+2}, v{vL}, 3, 1")
    A(f"v_lshl_or_b32 v{vKp}, v{vT+2}, 2, v{vKp}")
    A(f"v_lshlrev_b32 v{vKp}, 4, v{vKp}")
    A(f"v_and_b32 v{vVo}, 15, v{vL}")
    A(f"v_lshlrev_b32 v{vVo}, 4, v{vVo}")
    A(f"v_lshl_add_u32 v{vVo}, v{vT+1}, 8, v{vVo}")
    A(f"v_lshl_add_u32 v{vVo}, v{vT+3}, 17, v{vVo}")
    A(f"s_lshl_b32 s{sT}, s{sCT}, 17")
    A(f"s_lshl_b32 s{sT2}, s{sTB}, 10")
    A(f"s_add_u32 s{sQo}, s{sT}, s{sT2}")
    A(f"s_add_u32 s{sQo+1}, s{sQo}, 65536")
    A(f"s_lshl_b32 s{sKo}, s{sQo}, 1")
    A(f"s_add_u32 s{sKo}, s{sKo}, {WS_K:#x}")
    A(f"s_add_u32 s{sKo+1}, s{sKo}, 131072")
    A(f"s_lshl_b32 s{sGo}, s{sCT}, 6")
    A(f"s_add_u32 s{sGo}, s{sGo}, s{sTB}")
    A(f"s_lshl_b32 s{sGo}, s{sGo}, 7")
    A(f"s_add_u32 s{sGo}, s{sGo}, {WS_G:#x}")
    A(f"v_mov_b32 v{vOne}, 1")
    A(f"s_and_b32 s{sCn}, s2, 3")
    A(f"s_lshl_b32 s{sCn}, s{sCn}, 6")

    LD = Track(A, "lgkmcnt", 15)
    wbase = [A_SLOT[0] + 16384]
    xbase = [A_SLOT[0]] * 4
    def reads(n):
        out = []
        if n >= 64:
            return out
        kk = n % 4
        if n < 32:
            u = n // 4
            if xbase[kk] != A_SLOT[u]:
                out.append((f"v_add_u32 v{vXa+kk}, {(A_SLOT[u] - xbase[kk]) & 0xffffffff:#x}, v{vXa+kk}", None))
                xbase[kk] = A_SLOT[u]
            wb, wo = A_SLOT[u] + 16384, kk * 3072
        else:
            p = (n - 32) // 8
            wb, wo = B_SLOT[p], ((n - 32) % 8) * 3072
        if wbase[0] != wb:
            out.append((f"v_add_u32 v{vWa}, {(wb - wbase[0]) & 0xffffffff:#x}, v{vWa}", None))
            wbase[0] = wb
        if n < 32:
            out.append((f"ds_read_b128 v[{XR+4*n}:{XR+4*n+3}], v{vXa+kk}", (n, 0)))
        w = WF[n % 3]
        for m in range(3):
            for u2 in range(2):
                out.append((f"ds_read_b64_tr_b16 v[{w+4*m+2*u2}:{w+4*m+2*u2+1}], v{vWa} offset:{wo + m*1024 + u2*256}", (n, m)))
        return out
    def emit(lst):
        for ins, tag in lst:
            if tag is None: A(ins)
            else: LD(ins, tag)
    def mf(n, m):
        x = f"v[{XR+4*(n%32)}:{XR+4*(n%32)+3}]"; w = f"v[{WF[n%3]+4*m}:{WF[n%3]+4*m+3}]"
        acc = f"v[{ACC[m]}:{ACC[m]+15}]"
        c = "0" if n % 32 == 0 else acc
        LD.wait((n, m))
        A(f"v_mfma_f32_32x32x16_bf16 {acc}, {w}, {x}, {c}" if m < 2 else f"v_mfma_f32_32x32x16_bf16 {acc}, {x}, {w}, {c}")
    def grd(k):
        if 0 <= k < 32:
            LD(f"ds_read_b128 v[{GW[k%2]}:{GW[k%2]+3}], v{vGa} offset:{k*32}", ("g", k))
    def gmf(k):
        ga = f"v[{GA}:{GA+15}]"
        LD.wait(("g", k))
        A(f"v_mfma_f32_32x32x16_bf16 {ga}, v[{GW[k%2]}:{GW[k%2]+3}], v[{XR+4*k}:{XR+4*k+3}], {'0' if k == 0 else ga}")
        grd(k + 2)
    def cvtA(m):
        a, p = ACC[m], PK + 8 * ((m + 2) % 3)
        if m == 0:
            for i in range(8):
                A(f"v_pk_mul_f32 v[{a+2*i}:{a+2*i+1}], v[{a+2*i}:{a+2*i+1}], s[{sSc}:{sSc+1}]")
        for i in range(8):
            A(f"v_cvt_pk_bf16_f32 v{p+i}, v{a+2*i}, v{a+2*i+1}")
    def stA(m, h):
        p = PK + 8 * ((m + 2) % 3)
        d = f"v[{p+4*h}:{p+4*h+3}]"
        if m == 0:
            A(f"buffer_store_dwordx4 {d}, v{vL16}, {RWS}, s{sQo+h} offen")
        elif m == 1:
            A(f"buffer_store_dwordx4 {d}, v{vKp}, {RWS}, s{sKo+h} offen")
        else:
            A(f"buffer_store_dwordx4 {d}, v{vVo}, {RWS}, s{sKo} offen offset:{1024 + h*512}")
    stq = [(1, 0), (1, 1), (2, 0), (2, 1), (0, 0), (0, 1)]

    first_step = {4 * u: u for u in range(8)}
    first_step.update({32 + 8 * p: 8 + p for p in range(4)})
    assert P.CNT + 2 in first_step and P.WOST < 14 and P.WOST < P.CNT - 1 and P.SENT <= 26
    stamp(A, 1)
    A("s_barrier")
    stamp(A, 2)
    emit(reads(0)); emit(reads(1))
    for n in range(64):
        if n in P.CST:
            stamp(A, P.CST[n])
        if n == P.CNT:
            A("s_waitcnt vmcnt(0)")
        if n + 2 in first_step:
            A("s_barrier")
        if n == P.CNT:
            A(f"s_cmp_lg_u32 s{sWave}, 0")
            A(f"s_cbranch_scc1 {L}_noat")
            srd(A, rM, pDBG, 256)
            A("s_mov_b64 exec, 1")
            if not P.NOCNT: A(f"buffer_atomic_add v{vOne}, off, {R(rM)}, s{sCn} sc1")
            A("s_mov_b64 exec, -1")
            A.label(f"{L}_noat")
        rl = reads(n + 2)
        k = len(rl) - 4
        parts = [rl[:k], rl[k:k + 2], rl[k + 2:]] if rl else [[], [], []]
        if n == 15:
            grd(0); grd(1)
        if n == 32:
            stamp(A, 3)
            A("s_nop 5")
        order = range(3) if n != 32 else (1, 2, 0)
        for idx, m in enumerate(order):
            if n == 32:
                if idx == 1:
                    A(f"v_mul_f32 v{vGB}, s{sC}, v{GA}")
                    A(f"v_exp_f32_e64 v{vGB}, -v{vGB}")
                cvtA(m)
            mf(n, m)
            emit(parts[idx])
            if 16 <= n < 32 and idx != 1 and not P.NOGATE:
                gmf(2 * (n - 16) + idx // 2)
            if n >= 32 and stq and (idx == 0 or n > 32 and idx == 2):
                stA(*stq.pop(0))
        if n == 32:
            A(f"v_add_f32 v{vGB}, 1.0, v{vGB}")
            A(f"v_rcp_f32 v{vGB}, v{vGB}")
            A(f"v_lshrrev_b32 v{vT2}, 2, v{vL16}")
            stamp(A, 4)
        if n == 33:
            A("s_mov_b32 exec_hi, 0")
            A(f"buffer_store_dword v{vGB}, v{vT2}, {RWS}, s{sGo} offen")
            A("s_mov_b32 exec_hi, -1")
        if n == P.PFV: pfv()
        if n == P.WOLD: small_loads()
        if n == P.SENT: sentinel()
        if n == P.WOST:
            A(f"s_waitcnt vmcnt({(2 if P.WOLD <= P.SENT <= P.WOST else 0)})")
            LD(f"ds_read_b64_tr_b16 v[{WOF}:{WOF+1}], v{vWr} offset:{L_WOS}", "wo")
            LD(f"ds_read_b64_tr_b16 v[{WOF+2}:{WOF+3}], v{vWr} offset:{L_WOS+512}", "wo")
        if n == P.WOST + 1:
            LD.wait("wo")
            A(f"buffer_store_dwordx4 v[{WOF}:{WOF+3}], v{vL16}, {RWS}, s{sWst} offen")
        if n == 32 + P.PUBSTEP:
            A("s_mov_b64 exec, 1")
            A("s_waitcnt vmcnt(0)")
            A(f"buffer_store_dword v{vOne}, off, {RWS}, s{sF1}")
            A("s_mov_b64 exec, -1")
            stamp(A, 5)
        if n == 60:
            qx_addr(A, vT, sWave)
    stamp(A, 6)
    VF, ON, X1 = 96, 104, 88
    A(f"ds_write_b32 v{vT+1}, v{vGB} offset:{L_GX}")
    A("s_nop 7")
    for i in range(4):
        A(f"v_cvt_pk_bf16_f32 v{X1+4+i}, v{ACC[0]+8+2*i}, v{ACC[0]+9+2*i}")
    A(f"ds_write_b128 v{vT}, v[{X1+4}:{X1+7}] offset:1024")
    for i in range(4):
        A(f"v_cvt_pk_bf16_f32 v{cKQ+4+i}, v{ACC[0]+2*i}, v{ACC[0]+1+2*i}")
    for i in range(4):
        A(f"v_cvt_pk_bf16_f32 v{X1+i}, v{ACC[1]+8+2*i}, v{ACC[1]+9+2*i}")
    A(f"ds_write_b128 v{vT}, v[{X1}:{X1+3}]")
    for i in range(4):
        A(f"v_cvt_pk_bf16_f32 v{cKQ+i}, v{ACC[1]+2*i}, v{ACC[1]+1+2*i}")
    A("s_waitcnt lgkmcnt(0)")
    A("s_barrier")
    stamp(A, 7)
    for i in range(8):
        A(f"v_cvt_pk_bf16_f32 v{VF+i}, v{ACC[2]+2*i}, v{ACC[2]+2*i+1}")
    A(f"v_bfe_u32 v{vT+3}, v{vL}, 4, 1")
    A(f"v_and_b32 v{vT+4}, 0x1ff, v{vVo}")
    A(f"s_mul_i32 s{sT}, s{sWave}, {VB_RS}")
    A(f"s_add_u32 s{sT}, s{sT}, {L_VB}")
    A(f"v_mul_u32_u24 v{vT+3}, {4*VB_RS}, v{vT+3}")
    A(f"v_add_u32 v{vT+3}, s{sT}, v{vT+3}")
    A(f"v_add_u32 v{vT+4}, v{vT+3}, v{vT+4}")
    for i in range(4):
        A(f"v_mov_b32 v{ON+i}, 0x3f803f80")
    for grp in range(2):
        A(f"ds_write_b128 v{vT+4}, v[{VF+4*grp}:{VF+4*grp+3}] offset:{grp*512}")
    A(f"ds_write_b128 v{vT+3}, v[{ON}:{ON+3}] offset:1024")
    A.label(f"{L}_cdone")

def kv_partial(A, L, PB, AC, vT, vCa):
    A(f"v_lshrrev_b32 v{vT+1}, 5, v{vL}")
    A(f"v_bfe_u32 v{vT}, v{vL}, 2, 2")
    A(f"v_lshl_add_u32 v{vT}, v{vT+1}, 2, v{vT}")
    A(f"v_mul_u32_u24 v{vT}, {PHI_RS}, v{vT}")
    A(f"v_bfe_u32 v{vT+3}, v{vL}, 4, 1")
    A(f"v_lshl_add_u32 v{vT}, v{vT+3}, 5, v{vT}")
    A(f"v_and_b32 v{vT+2}, 3, v{vL}")
    A(f"v_lshl_add_u32 v{vT}, v{vT+2}, 3, v{vT}")
    A(f"s_mul_i32 s{sT}, s{sWave}, {32*PHI_RS}")
    A(f"v_add_u32 v{vT}, s{sT}, v{vT}")
    A(f"v_cmp_eq_u32 vcc, 0, v{vT+3}")
    A(f"v_and_b32 v{vT+2}, 15, v{vL}")
    A(f"v_lshlrev_b32 v{vT+2}, 4, v{vT+2}")
    A(f"v_lshl_add_u32 v{vT+2}, v{vT+1}, 8, v{vT+2}")
    A(f"v_add_u32 v{vT+3}, 512, v{vT+2}")
    A(f"v_mov_b32 v{vT+1}, 1024")
    A(f"s_mul_i32 s{sT}, s{sWave}, {4*VB_RS}")
    A(f"v_cndmask_b32 v{vT+2}, v{vT+1}, v{vT+2}, vcc")
    A(f"v_cndmask_b32 v{vT+3}, v{vT+1}, v{vT+3}, vcc")
    A(f"v_add_u32 v{vT+2}, s{sT}, v{vT+2}")
    A(f"v_add_u32 v{vT+3}, s{sT}, v{vT+3}")
    LD = Track(A, "lgkmcnt", 15)
    def rd(n):
        rt, m = n // 2, n % 2
        b = PB + n * 8
        for u in range(2):
            LD(f"ds_read_b64_tr_b16 v[{b+2*u}:{b+2*u+1}], v{vT} offset:{L_PHI + rt*64*PHI_RS + (16*m+8*u)*PHI_RS}", n)
        LD(f"ds_read_b128 v[{b+4}:{b+7}], v{vT+2+m} offset:{L_VB + rt*VB_RS}", n)
    for n in range(4):
        rd(n)
    A(f"s_lshl_b32 s{sT}, s{sCT}, 1")
    A(f"s_add_u32 s{sT}, s{sT}, s{sWave}")
    A(f"s_lshl_b32 s{sT}, s{sT}, 4")
    A(f"s_add_u32 s{sT}, s{sT}, s{sRB}")
    A(f"s_mul_i32 s{sT}, s{sT}, {KVP_B}")
    A(f"s_add_u32 s{sT}, s{sT}, {WS_KV:#x}")
    ac = f"v[{AC}:{AC+15}]"
    for n in range(8):
        b = PB + n * 8
        LD.wait(n)
        A(f"v_mfma_f32_32x32x16_bf16 {ac}, v[{b}:{b+3}], v[{b+4}:{b+7}], {'0' if n == 0 else ac}")
        if n + 4 < 8:
            rd(n + 4)
    A("s_mov_b32 exec_lo, 0x1ffff")
    A("s_mov_b32 exec_hi, 0x1ffff")
    A("s_nop 9")
    for q in range(4):
        A(f"buffer_store_dwordx4 v[{AC+4*q}:{AC+4*q+3}], v{vCa}, {RWS}, s{sT} offen offset:{q*KVP_Q}")
    A("s_mov_b64 exec, -1")
```

```python
from collections import defaultdict
from fx_common import *
import fx1
from k1 import feature_map

class P2Opt:
    PB, PQK, PA, PX = 2, 7, 12, 15
    T_PUB = 4
    T_POLL = 15
    T_CHK = 18
    T_SUM = 25
    T_XB = 28
    T_PUB2 = 36
    T_POLL2 = 45
    T_OB = 48
    T_P3B = 51
    T_OA = 62
    PRIO = {0: 3, 14: 2, 22: 1, 26: 0, 28: 3, 46: 2, 57: 1, 62: 0}
    STAMPS = {4: 9, 8: 11, 16: 12, 20: 42, 24: 13, 28: 43, 32: 14, 38: 44, 40: 15, 48: 48, 50: 45, 56: 49}

XB = 32768
XRS = 528
XKQ = 32 * XRS

def gen(A, L, upto):
    A(f"s_branch {L}_cdone")
    fx1.compute(A, L)

    O, S = 0, [16, 32]
    Q, K, Va, Vb = 48, 52, 56, 60
    vIdx, vKa, vVa, vVb, vG, vT = 64, 65, 67, 69, 71, 72
    PQ, KVP, DB, ACC, WO, FL = 80, 88, 120, 136, 168, 232
    OF = KVP
    vOne, vPad, vFa, vCa = 240, 241, 242, 243
    sTile, sKV, sOB, sWo, sOF, sMask, sSpin, sM = S0, S0 + 1, S0 + 2, S0 + 3, S0 + 4, S0 + 5, S0 + 6, S0 + 7
    sAcc, sFL, sCB, sKQ, sC2, sOF2, sInf, sVer, sKP, sH2 = 84, 86, 87, 88, 89, 90, 91, 92, 93, 94
    sOw = sOo
    rOUT = rX
    P = P2Opt

    vm, lds = [], []
    def VM(ins, tag=None):
        A(ins); vm.append(tag)
    def vwait(tag, extra=""):
        n = len(vm) - 1 - max(i for i, x in enumerate(vm) if x == tag)
        assert n <= 63
        A(f"s_waitcnt vmcnt({n}){extra}")
    def LD(ins, tag=None):
        A(ins); lds.append(tag)
    def lwait(tag):
        n = len(lds) - 1 - max(i for i, x in enumerate(lds) if x == tag)
        A(f"s_waitcnt lgkmcnt({min(n, 15)})")

    D2, E, PHK, WPF = [16, 32], 88, 104, 120
    stamp(A, 40)
    A(f"s_lshr_b32 s{sH2}, s{sWave}, 2")
    A(f"v_lshrrev_b32 v{vT+1}, 5, v{vL}")
    A(f"v_bfe_u32 v{vT}, v{vL}, 2, 2")
    A(f"v_lshl_add_u32 v{vT}, v{vT+1}, 2, v{vT}")
    A(f"v_lshlrev_b32 v{vT}, 5, v{vT}")
    A(f"v_and_b32 v{vT+2}, 3, v{vL}")
    A(f"s_lshl_b32 s{sT}, s{sH2}, 9")
    A(f"v_lshl_add_u32 v{vT}, v{vT+2}, 3, v{vT}")
    A(f"v_add_u32 v{vT}, s{sT}, v{vT}")
    for u in range(2):
        A(f"ds_read_b64_tr_b16 v[{WPF+2*u}:{WPF+2*u+1}], v{vT} offset:{L_WPHI + u*256}")
    A(f"s_lshl_b32 s{sTile}, s{sQB}, 3")
    A(f"s_add_u32 s{sTile}, s{sTile}, s{sWave}")
    A(f"s_lshl_b32 s{sT}, s{sHead}, 6")
    A(f"s_add_u32 s{sT}, s{sT}, s{sTile}")
    A(f"s_lshl_b32 s{sT}, s{sT}, 10")
    A(f"v_and_b32 v{vT+2}, 31, v{vL}")
    A(f"buffer_load_dwordx4 v[{Q}:{Q+3}], v{vL16}, {RWS}, s{sT} offen")
    A(f"s_lshr_b32 s{sT}, s{sHead}, 1")
    A(f"s_lshl_b32 s{sT}, s{sT}, 6")
    A(f"s_add_u32 s{sT}, s{sT}, s{sTile}")
    A(f"s_lshl_b32 s{sT}, s{sT}, 7")
    A(f"s_add_u32 s{sT}, s{sT}, {WS_G:#x}")
    A(f"v_lshlrev_b32 v{vT+3}, 2, v{vT+2}")
    A(f"buffer_load_dword v{vG}, v{vT+3}, {RWS}, s{sT} offen")
    A("s_waitcnt lgkmcnt(0)")
    for i in range(2):
        A(f"v_mfma_f32_32x32x16_bf16 v[{D2[i]}:{D2[i]+15}], v[{WPF}:{WPF+3}], v[{cKQ+4*i}:{cKQ+4*i+3}], 0")
    A(f"v_min_u32 v{vCa}, 16, v{vT+2}")
    A(f"v_mul_u32_u24 v{vT+3}, 17, v{vT+1}")
    A(f"v_add_lshl_u32 v{vCa}, v{vCa}, v{vT+3}, 4")
    A(f"v_mul_u32_u24 v{vT+2}, {PHI_RS}, v{vT+2}")
    A(f"v_lshl_add_u32 v{vT+2}, v{vT+1}, 3, v{vT+2}")
    A(f"s_and_b32 s{sT}, s{sWave}, 3")
    A(f"s_lshl_b32 s{sT}, s{sT}, 1")
    A(f"s_add_u32 s{sT}, s{sT}, s{sH2}")
    A(f"s_mul_i32 s{sT}, s{sT}, {32*PHI_RS}")
    A(f"v_add_u32 v{vT+2}, s{sT}, v{vT+2}")
    A(f"v_add_u32 v{vKa}, {KVBASE}, v{vL16}")
    A(f"v_add_u32 v{vKa+1}, {KVBASE + 32*TS}, v{vL16}")
    A(f"v_and_b32 v{vT+3}, 15, v{vL}")
    A(f"v_lshlrev_b32 v{vT+3}, 4, v{vT+3}")
    A(f"v_lshl_add_u32 v{vT+3}, v{vT+1}, 8, v{vT+3}")
    A(f"v_and_b32 v{vT+1}, 16, v{vL}")
    A(f"v_cmp_eq_u32 vcc, 0, v{vT+1}")
    A(f"v_add_u32 v{vVa+1}, {KVBASE + 1024}, v{vT+3}")
    A(f"v_add_u32 v{vVb+1}, {KVBASE + 1536}, v{vT+3}")
    A(f"v_mov_b32 v{vT+4}, {KVBASE + 2048}")
    A(f"v_cndmask_b32 v{vVa}, v{vT+4}, v{vVa+1}, vcc")
    A(f"v_cndmask_b32 v{vVb}, v{vT+4}, v{vVb+1}, vcc")
    feature_map(A, D2[0], vT, vT + 1, E, PHK, sC)
    for qd in range(4):
        A(f"ds_write_b64 v{vT+2}, v[{PHK+2*qd}:{PHK+2*qd+1}] offset:{L_PHI + qd*16}")
    feature_map(A, D2[1], vT, vT + 1, E, PQ, sC)
    stamp(A, 41)
    A(f"v_add_u32 v{vVa+1}, {32*TS}, v{vVa}")
    A(f"v_add_u32 v{vVb+1}, {32*TS}, v{vVb}")
    A(f"v_min_u32 v{vPad}, {POS0 - 1}, v{vL}")
    A(f"v_mul_u32_u24 v{vPad}, {TS}, v{vPad}")
    for i in range(4):
        A(f"v_mov_b32 v{DB+i}, 0x3f803f80")
    A(f"v_mov_b32 v{vIdx}, 0xdddddddd")
    A(f"v_mov_b32 v{vOne}, 1")
    for i in range(16):
        A(f"v_mov_b32 v{O+i}, 0")
    A(f"s_lshr_b32 s{sKQ}, s{sWave}, 1")
    A(f"s_and_b32 s{sC2}, s{sWave}, 1")
    A(f"s_bfe_u32 s{sCB}, s2, 0x20003")
    A(f"s_mul_i32 s{sM}, s{sWave}, {3*TS}")
    A(f"s_and_b32 s{sT}, s{sWave}, 3")
    A(f"s_lshl_b32 s{sT}, s{sT}, 2")
    A(f"s_add_u32 s{sT}, s{sT}, s{sH2}")
    A(f"s_lshl_b32 s{sKV}, s{sHead}, 6")
    A(f"s_add_u32 s{sKV}, s{sKV}, s{sT}")
    A(f"s_lshl_b32 s{sKV}, s{sKV}, 11")
    A(f"s_add_u32 s{sKV}, s{sKV}, {WS_K + 34*2048:#x}")
    A(f"s_lshl_b32 s{sT}, s{sH2}, 11")
    A(f"s_add_u32 s{sOB}, s{sKV}, s{sT}")
    A(f"s_add_u32 m0, s{sM}, {KVBASE}")
    A(f"s_waitcnt vmcnt(0) lgkmcnt(0)")
    stamp(A, 50)
    A("s_barrier")
    stamp(A, 51)
    A(f"s_cmp_ge_u32 s{sWave}, 2")
    A(f"s_cbranch_scc1 {L}_nokv")
    A("s_setprio 3")
    fx1.kv_partial(A, L, WO, ACC, FL, vCa)
    A.label(f"{L}_nokv")
    vm.append("p1")

    q = f"v[{Q}:{Q+3}]"; k = f"v[{K}:{K+3}]"; va = f"v[{Va}:{Va+3}]"; vb = f"v[{Vb}:{Vb+3}]"
    o = f"v[{O}:{O+15}]"
    def rd(reg, base, t, tag):
        p = (t + POS0) % 64
        LD(f"ds_read_b128 {reg}, v{base + p // 32} offset:{(p % 32) * TS}", (tag, t))
    rd(k, vKa, 0, "k")
    rd(va, vVa, 0, "va")
    LD(f"ds_write_b128 v{vPad}, v[{DB}:{DB+3}] offset:{KVBASE + 2048}")

    ev = defaultdict(list)
    def at(t, p, f):
        ev[(t, p)].append(f)

    def chunk(c):
        def f():
            A(f"s_add_u32 m0, s{sM}, {KVBASE + c*TS}")
            A(f"s_add_u32 s{sT}, s{sOB if c else sKV}, {(13 + c)*2048 if c else 0}")
            VM(f"buffer_load_dwordx4 v{vL16}, {RWS}, s{sT} offen lds", "ch")
            VM(f"buffer_load_dwordx4 v{vL16}, {RWS}, s{sT} offen offset:1024 lds", "ch")
        return f
    for c in range(3):
        at(c, 9, chunk(c))
    lwait(("k", 0))
    A(f"v_mfma_f32_32x32x16_bf16 v[{S[0]}:{S[0]+15}], {k}, {q}, 0")
    rd(k, vKa, 1, "k")
    A(f"s_lshl_b32 s{sWo}, s{sCB}, 1")
    A(f"s_add_u32 s{sWo}, s{sWo}, s{sC2}")
    A(f"s_lshl_b32 s{sWo}, s{sWo}, 17")
    A(f"s_lshl_b32 s{sT}, s{sKQ}, 13")
    A(f"s_add_u32 s{sWo}, s{sWo}, s{sT}")
    A(f"s_add_u32 s{sWo}, s{sWo}, {WS_WO:#x}")
    A(f"s_and_b32 s{sOF}, s2, 7")
    A(f"s_lshl_b32 s{sT2}, s{sQB}, 3")
    A(f"s_add_u32 s{sOF}, s{sOF}, s{sT2}")
    A(f"s_lshl_b32 s{sOF}, s{sOF}, 16")
    A(f"s_add_u32 s{sOF}, s{sOF}, s{sT}")
    A(f"s_add_u32 s{sOF}, s{sOF}, {WS_O:#x}")

    def pub():
        A(f"s_cmp_ge_u32 s{sWave}, 2")
        A(f"s_cbranch_scc1 {L}_nopub")
        vwait("p1")
        A("s_mov_b64 exec, 1")
        A(f"buffer_store_dword v{vOne}, off, {RWS}, s{sF1L}")
        A("s_mov_b64 exec, -1")
        A.label(f"{L}_nopub")
    at(P.T_PUB, 4, pub)
    def fl_loads(V):
        V(f"buffer_load_dword v{FL}, v{vFa}, {RWS}, s{sFL} offen sc1", "fl")
    def fl_check():
        A(f"v_cmp_ne_u32 vcc, 1, v{FL}")
    def fl_poll():
        A(f"s_xor_b32 s{sT}, s{sH2}, 1")
        A(f"s_lshl_b32 s{sT}, s{sT}, 4")
        A(f"s_add_u32 s{sT}, s{sT}, s{sRB}")
        A(f"s_lshl_b32 s{sT2}, s{sH2}, 4")
        A(f"v_add_u32 v{vFa}, s{sT2}, v{vL}")
        A(f"v_mov_b32 v{vT}, s{sT}")
        A(f"v_cmp_gt_u32 vcc, 16, v{vL}")
        A(f"s_lshl_b32 s{sFL}, s{sCT}, 11")
        A(f"v_cndmask_b32 v{vFa}, v{vT}, v{vFa}, vcc")
        A(f"s_add_u32 s{sFL}, s{sFL}, {F1L:#x}")
        A(f"v_lshlrev_b32 v{vFa}, 6, v{vFa}")
        fl_loads(VM)
    at(P.T_POLL, 4, fl_poll)
    def chk():
        A(f"s_mul_i32 s{sKP}, s{sHB}, {16*KVP_B}")
        A(f"s_and_b32 s{sT}, s{sWave}, 3")
        A(f"s_mul_i32 s{sT}, s{sT}, {KVP_Q}")
        A(f"s_add_u32 s{sKP}, s{sKP}, s{sT}")
        vwait("fl")
        fl_check()
        A(f"s_cbranch_vccnz {L}_flspin")
        A.label(f"{L}_flok")
    at(P.T_CHK, 3, chk)
    def tail(f):
        main = A.lines; A.lines = []
        f()
        A.tails.append(A.lines); A.lines = main
    def flspin():
        A.label(f"{L}_flspin")
        A(f"s_mov_b32 s{sSpin}, {SPIN:#x}")
        A.label(f"{L}_flspin1")
        fl_loads(lambda i, t: A(i))
        A(f"s_sub_u32 s{sSpin}, s{sSpin}, 1")
        A(f"s_cbranch_scc1 {L}_flok")
        A("s_waitcnt vmcnt(0)")
        fl_check()
        A(f"s_cbranch_vccnz {L}_flspin1")
        A(f"s_branch {L}_flok")
    tail(flspin)
    HB = [KVP, ACC]
    def kvp(i):
        def f():
            A(f"s_add_u32 s{sT}, s{sKP}, {WS_KV + 2*i*KVP_B:#x}")
            for e in range(2):
                r = HB[i // 4] + 8 * (i % 4) + 4 * e
                VM(f"buffer_load_dwordx4 v[{r}:{r+3}], v{vCa}, {RWS}, s{sT} offen offset:{e*KVP_B}", ("kvp", i // 4))
        return f
    for i in range(8):
        at(P.T_CHK + i // 3, (4, 9, 14)[i % 3], kvp(i))
    def wo(n, br):
        i, j = n // 2, n % 2
        def f():
            A(f"s_add_u32 s{sT}, s{sWo}, {j*65536 + br*32768 + i*1024:#x}")
            VM(f"buffer_load_dwordx4 v[{WO+4*n}:{WO+4*n+3}], v{vL16}, {RWS}, s{sT} offen", ("wo", br))
        return f
    for n in range(16):
        at(P.T_PUB + 2 + n // 2, (4, 14)[n % 2], wo(n, 1))
    assert P.T_PUB + 2 + 8 <= P.T_POLL + 1
    def ksum(h, step):
        def f():
            if step == 0:
                vwait(("kvp", h))
            n = 16 >> step
            for i in range(0, n, 2):
                r = HB[h] + i
                A(f"v_pk_add_f32 v[{r}:{r+1}], v[{r}:{r+1}], v[{r+n}:{r+n+1}]")
        return f
    for h in range(2):
        at(P.T_SUM + h, 4, ksum(h, 0)); at(P.T_SUM + h, 9, ksum(h, 1)); at(P.T_SUM + h, 14, ksum(h, 2))
    def kwr():
        A(f"s_lshl_b32 s{sT}, s{sH2}, 11")
        A(f"s_lshl_b32 s{sT2}, s{sKQ}, 10")
        A(f"s_add_u32 s{sT}, s{sT}, s{sT2}")
        A(f"s_lshl_b32 s{sT2}, s{sC2}, 3")
        A(f"s_add_u32 s{sT}, s{sT}, s{sT2}")
        for h in range(2):
            A(f"v_cvt_pk_bf16_f32 v{vT+2*h}, v{HB[h]}, v{HB[h]+1}")
            A(f"v_cvt_pk_bf16_f32 v{vT+2*h+1}, v{HB[h]+2}, v{HB[h]+3}")
        A(f"v_add_u32 v{vT+4}, s{sT}, v{vL16}")
        A(f"s_lshl_b32 s{sT}, s{sH2}, 12")
        for h in range(2):
            LD(f"ds_write_b64 v{vT+4}, v[{vT+2*h}:{vT+2*h+1}] offset:{L_KVB + h*2048}", "kvw")
        A(f"v_add_u32 v{vT+5}, s{sT}, v{vL16}")
    at(P.T_SUM + 2, 4, kwr)
    assert P.T_SUM + 2 < P.T_XB <= 64 - POS0 - 3
    def bx():
        vwait("ch")
        lwait("kvw")
        A("s_barrier")
        for n in range(4):
            LD(f"ds_read_b128 v[{KVP+4*n}:{KVP+4*n+3}], v{vT+5} offset:{L_KVB + n*1024}", ("kvf", n))
    at(P.T_XB, 0, bx)
    def bm(n):
        def f():
            lwait(("kvf", n))
            pqr = PQ + 4 * (n % 2)
            A(f"v_mfma_f32_32x32x16_bf16 v[{DB}:{DB+15}], v[{KVP+4*n}:{KVP+4*n+3}], v[{pqr}:{pqr+3}], {'0' if n == 0 else f'v[{DB}:{DB+15}]'}")
        return f
    for n in range(4):
        at(P.T_XB + n // 2, (10, P.PX)[n % 2], bm(n))
    def bfin():
        A(f"v_add_f32 v{vT}, {f2u(1e-6):#x}, v{DB+8}")
        A(f"v_rcp_f32 v{vT}, v{vT}")
        A(f"v_sub_f32 v{vT+1}, 1.0, v{vGB}")
        A(f"s_lshl_b32 s{sT}, s{sTB}, 6")
        A(f"s_add_u32 s{sT}, s{sT}, s{sHB}")
        A(f"s_lshl_b32 s{sT}, s{sT}, 10")
        A(f"s_add_u32 s{sT}, s{sT}, {WS_O + 32768:#x}")
        A(f"v_mul_f32 v{vT}, v{vT}, v{vT+1}")
        for i in range(8):
            A(f"v_mul_f32 v{DB+i}, v{DB+i}, v{vT}")
        for i in range(4):
            A(f"v_cvt_pk_bf16_f32 v{DB+8+i}, v{DB+2*i}, v{DB+2*i+1}")
        VM(f"buffer_store_dwordx4 v[{DB+8}:{DB+11}], v{vL16}, {RWS}, s{sT} offen", "ob")
    at(P.T_XB + 2, 14, bfin)
    def pub2():
        vwait("ob")
        A("s_mov_b64 exec, 1")
        VM(f"buffer_store_dword v{vOne}, off, {RWS}, s{sF2}")
        A("s_mov_b64 exec, -1")
    at(P.T_PUB2, 4, pub2)
    def f2_load(V):
        V(f"buffer_load_dword v{FL}, v{vFa}, {RWS}, s{sFL} offen sc1", "f2")
    def f2_poll():
        A(f"s_sub_u32 s{sFL}, s{sOF}, {WS_O:#x}")
        A(f"v_and_b32 v{vFa}, 7, v{vL}")
        A(f"s_lshr_b32 s{sFL}, s{sFL}, 16")
        A(f"s_lshl_b32 s{sFL}, s{sFL}, 2")
        A(f"s_add_u32 s{sFL}, s{sFL}, s{sKQ}")
        A(f"s_lshl_b32 s{sFL}, s{sFL}, 9")
        A(f"v_lshlrev_b32 v{vFa}, 6, v{vFa}")
        A(f"s_add_u32 s{sFL}, s{sFL}, {F2:#x}")
        f2_load(VM)
    at(P.T_POLL2, 4, f2_poll)
    def f2chk():
        vwait("f2")
        A(f"v_cmp_eq_u32 vcc, 0, v{FL}")
        A(f"s_cbranch_vccnz {L}_obspin")
        A.label(f"{L}_obok")
    at(P.T_OB, 3, f2chk)
    def obspin():
        A.label(f"{L}_obspin")
        A(f"s_mov_b32 s{sSpin}, {SPIN:#x}")
        A.label(f"{L}_obspin1")
        f2_load(lambda i, t: A(i))
        A(f"s_sub_u32 s{sSpin}, s{sSpin}, 1")
        A(f"s_cbranch_scc1 {L}_obok")
        A("s_waitcnt vmcnt(0)")
        A(f"v_cmp_eq_u32 vcc, 0, v{FL}")
        A(f"s_cbranch_vccnz {L}_obspin1")
        A(f"s_branch {L}_obok")
    tail(obspin)
    def of_load(V, i, br, sc=""):
        if br:
            A(f"s_add_u32 s{sT}, s{sOF}, {br*32768 + i*1024:#x}")
            V(f"buffer_load_dwordx4 v[{OF+4*i}:{OF+4*i+3}], v{vL16}, {RWS}, s{sT} offen{sc}", ("of", br, i))
        else:
            V(f"buffer_load_dwordx4 v[{OF+4*i}:{OF+4*i+3}], v{vL16}, {RWS}, s{sOF2 if i >= 4 else sOF} offen offset:{(i%4)*1024}{sc}", ("of", br, i))
    for i in range(8):
        at(P.T_OB + i // 3, (4, 9, 14)[i % 3], lambda i=i: of_load(VM, i, 1))
    def p3m(n, first=False):
        i, j = n // 2, n % 2
        acc = f"v[{ACC+16*j}:{ACC+16*j+15}]"
        A(f"v_mfma_f32_32x32x16_bf16 {acc}, v[{WO+4*n}:{WO+4*n+3}], v[{OF+4*i}:{OF+4*i+3}], {'0' if first else acc}")
    for n in range(16):
        def f(n=n):
            if n % 2 == 0:
                vwait(("of", 1, n // 2))
            p3m(n, n < 2)
            wo(n, 0)()
        at(P.T_P3B + n // 2, (10, P.PX)[n % 2], f)
    assert P.T_P3B + 8 < P.T_OA
    def f3_poll():
        A(f"s_add_u32 s{sFL}, s{sFL}, {F3 - F2:#x}")
        f2_load(VM)
    at(P.T_OA, 4, f3_poll)

    for t in range(64):
        cur, nxt = S[t & 1], S[(t + 1) & 1]
        if t in P.STAMPS:
            stamp(A, P.STAMPS[t])
        for i in range(17):
            for f in ev.pop((t, i), []):
                f()
            if i == 0 and t in P.PRIO:
                A(f"s_setprio {P.PRIO[t]}")
            if i == P.PB:
                if t > 0:
                    lwait(("vb", t - 1))
                    A(f"v_smfmac_f32_32x32x32_bf16 {o}, {vb}, v[{nxt+8}:{nxt+15}], v{vIdx}")
                rd(vb, vVb, t, "vb")
            if i == P.PQK and t < 63:
                lwait(("k", t + 1))
                A(f"v_mfma_f32_32x32x16_bf16 v[{nxt}:{nxt+15}], {k}, {q}, 0")
                if t < 62:
                    rd(k, vKa, t + 2, "k")
            if i == P.PA:
                lwait(("va", t))
                A(f"v_smfmac_f32_32x32x32_bf16 {o}, {va}, v[{cur}:{cur+7}], v{vIdx}")
                if t < 63:
                    rd(va, vVa, t + 1, "va")
            if i < 16:
                A(f"v_exp_f32 v{cur+i}, v{cur+i}")
    assert not ev, ev.keys()
    last = S[1]
    A("s_waitcnt lgkmcnt(0)")
    A("s_nop 0")
    A(f"v_smfmac_f32_32x32x32_bf16 {o}, {vb}, v[{last+8}:{last+15}], v{vIdx}")
    stamp(A, 52)
    x0, x1, x2 = S[0], S[0] + 1, S[0] + 2
    A(f"v_and_b32 v{x0}, 31, v{vL}")
    A(f"v_mul_u32_u24 v{x0}, {XRS}, v{x0}")
    A(f"v_lshrrev_b32 v{x1}, 5, v{vL}")
    A(f"v_lshl_add_u32 v{x0}, v{x1}, 4, v{x0}")
    A(f"s_mul_i32 s{sT}, s{sKQ}, {XKQ}")
    A(f"s_lshl_b32 s{sT2}, s{sC2}, 8")
    A(f"s_add_u32 s{sT}, s{sT}, s{sT2}")
    A(f"s_add_u32 s{sT}, s{sT}, {XB}")
    A(f"v_add_u32 v{x0}, s{sT}, v{x0}")
    A(f"s_mov_b32 s{sMask}, 0xff")
    A(f"s_mov_b32 s{sSpin}, {SPIN:#x}")
    A(f"s_mov_b32 s{sInf}, 0")
    if Opt.STAMP: A(f"s_mov_b32 s99, 1")
    A(f"s_add_u32 s{sOF2}, s{sOF}, 4096")
    A("s_nop 0")
    A(f"v_add_f32_e64 v{vT}, |v{O}|, |v{O+1}|")
    A(f"v_min3_f32 v{vT+1}, |v{O}|, |v{O+1}|, |v{O+2}|")
    A(f"v_rcp_f32 v{vT+2}, v{O+8}")
    for i in range(2, 8):
        A(f"v_add_f32_e64 v{vT}, v{vT}, |v{O+i}|")
    A(f"v_min3_f32 v{vT+1}, v{vT+1}, |v{O+3}|, |v{O+4}|")
    A(f"v_min3_f32 v{vT+1}, v{vT+1}, |v{O+5}|, |v{O+6}|")
    A(f"v_min_f32_e64 v{vT+1}, v{vT+1}, |v{O+7}|")
    A(f"v_cmp_le_f32 vcc, {f2u(2.0**-60):#x}, v{O+8}")
    A(f"s_mov_b64 s[{sAcc}:{sAcc+1}], vcc")
    A(f"v_cmp_ge_f32 vcc, {f2u(2.0**100):#x}, v{O+8}")
    A(f"s_and_b64 s[{sAcc}:{sAcc+1}], s[{sAcc}:{sAcc+1}], vcc")
    A(f"v_cmp_ge_f32 vcc, {f2u(2.0**120):#x}, v{vT}")
    A(f"s_and_b64 s[{sAcc}:{sAcc+1}], s[{sAcc}:{sAcc+1}], vcc")
    A(f"v_cmp_le_f32 vcc, {f2u(2.0**-100):#x}, v{vT+1}")
    A(f"s_and_b64 s[{sAcc}:{sAcc+1}], s[{sAcc}:{sAcc+1}], vcc")
    A(f"s_cmp_eq_u64 s[{sAcc}:{sAcc+1}], -1")
    A(f"s_cbranch_scc0 {L}_slow")
    A.label(f"{L}_fin")
    A(f"v_mul_f32 v{vT}, v{vT+2}, v{vG}")
    for i in range(8):
        A(f"v_mul_f32 v{O+i}, v{O+i}, v{vT}")
    for i in range(4):
        A(f"v_cvt_pk_bf16_f32 v{K+i}, v{O+2*i}, v{O+2*i+1}")
    A(f"buffer_store_dwordx4 {k}, v{vL16}, {RWS}, s{sOw} offen")
    A("s_mov_b64 exec, 1")
    A(f"buffer_store_dword v{vOne}, off, {RWS}, s{sF3}")
    A("s_mov_b64 exec, -1")
    stamp(A, 53)
    A("s_barrier")
    A("s_waitcnt vmcnt(2)")
    A(f"s_branch {L}_p3a")
    A.label(f"{L}_p3l")
    A("s_waitcnt vmcnt(0)")
    A.label(f"{L}_p3a")
    if Opt.STAMP:
        A(f"s_sub_u32 s98, {SPIN + 17}, s{sSpin}")
        A(f"s_min_u32 s98, s98, 27")
        stamp(A, "s98")
    NV = lambda i, t: A(i)
    A(f"v_cmp_eq_u32 vcc, 1, v{FL}")
    A(f"s_mov_b32 s{sVer}, s{sInf}")
    A(f"s_and_b32 s{sInf}, vcc_lo, s{sMask}")
    A(f"s_cbranch_scc0 {L}_p3b")
    for i in range(8):
        A(f"s_bitcmp1_b32 s{sInf}, {i}")
        A(f"s_cbranch_scc0 {L}_m{i}")
        of_load(NV, i, 0)
        A.label(f"{L}_m{i}")
    A.label(f"{L}_p3b")
    A(f"s_andn2_b32 s{sMask}, s{sMask}, s{sInf}")
    A(f"s_cbranch_scc0 {L}_p3c")
    f2_load(NV)
    A.label(f"{L}_p3c")
    A(f"s_cmp_eq_u32 s{sVer}, 0")
    A(f"s_cbranch_scc1 {L}_p3d")
    for i in range(8):
        A(f"s_bitcmp1_b32 s{sVer}, {i}")
        A(f"s_cbranch_scc0 {L}_n{i}")
        A(f"v_max3_u32 v{vT}, v{OF+4*i}, v{OF+4*i+1}, v{OF+4*i+2}")
        A(f"v_max_u32 v{vT}, v{vT}, v{OF+4*i+3}")
        A(f"v_cmp_eq_u32 vcc, -1, v{vT}")
        A(f"s_cbranch_vccnz {L}_r{i}")
        p3m(2 * i); p3m(2 * i + 1)
        A.label(f"{L}_n{i}")
        def retry(i=i):
            A.label(f"{L}_r{i}")
            of_load(NV, i, 0, " sc1")
            A(f"s_bitset1_b32 s{sInf}, {i}")
            if Opt.STAMP: A(f"s_add_u32 s99, s99, 1")
            A(f"s_branch {L}_n{i}")
        tail(retry)
    A.label(f"{L}_p3d")
    A(f"s_sub_u32 s{sSpin}, s{sSpin}, 1")
    A(f"s_cbranch_scc1 {L}_p3x")
    A(f"s_or_b32 s{sT}, s{sMask}, s{sInf}")
    A(f"s_cbranch_scc1 {L}_p3l")
    A.label(f"{L}_p3x")
    stamp(A, 54)
    if Opt.STAMP:
        A(f"v_writelane_b32 v255, s99, 47")
        A(f"v_writelane_b32 v255, s{sSpin}, 46")
    A(f"v_lshrrev_b32 v{x1}, 4, v{vL}")
    A(f"v_and_b32 v{x2}, 15, v{vL}")
    A(f"v_lshlrev_b32 v{x2}, 4, v{x2}")
    A(f"v_lshl_add_u32 v{vT+1}, v{x1}, 10, v{x2}")
    A(f"v_mul_u32_u24 v{x1}, {XRS}, v{x1}")
    A(f"v_lshl_add_u32 v{x1}, v{x2}, 1, v{x1}")
    A(f"s_mul_i32 s{sT}, s{sWave}, {4*XRS}")
    A(f"s_add_u32 s{sT}, s{sT}, {XB}")
    A(f"v_add_u32 v{x1}, s{sT}, v{x1}")
    srd(A, rOUT, pOUT, 2 * MB)
    for j in range(2):
        for qd in range(4):
            r = ACC + 16 * j + 4 * qd
            A(f"ds_write_b128 v{x0}, v[{r}:{r+3}] offset:{j*128 + qd*32}")
    A(f"s_and_b32 s{sT}, s2, 7")
    A(f"s_lshl_b32 s{sT2}, s{sQB}, 3")
    A(f"s_add_u32 s{sT}, s{sT}, s{sT2}")
    A(f"s_lshl_b32 s{sT}, s{sT}, 3")
    A(f"s_add_u32 s{sT}, s{sT}, s{sWave}")
    A(f"s_lshl_b32 s{sT}, s{sT}, 12")
    A(f"s_lshl_b32 s{sT2}, s{sCB}, 8")
    A(f"s_add_u32 s{sT}, s{sT}, s{sT2}")
    A("s_waitcnt lgkmcnt(0)")
    A("s_barrier")
    stamp(A, 55)
    for kq in range(4):
        for h in range(2):
            r = WO + 8 * kq + 4 * h
            A(f"ds_read_b128 v[{r}:{r+3}], v{x1} offset:{kq*XKQ + h*16}")
    for kq in range(1, 4):
        A(f"s_waitcnt lgkmcnt({6 - 2*kq})")
        for i in range(8):
            A(f"v_add_f32 v{WO+i}, v{WO+i}, v{WO+8*kq+i}")
    for i in range(4):
        A(f"v_cvt_pk_bf16_f32 v{K+i}, v{WO+2*i}, v{WO+2*i+1}")
    A(f"buffer_store_dwordx4 {k}, v{vT+1}, {R(rOUT)}, s{sT} offen")
    stamp_end(A, 0, rWS, sWave)

    def slow():
        NM = DB
        s0 = S[1]
        sIt = sT3
        A.label(f"{L}_slow")
        A(f"v_mov_b32 v{vT}, 0xff800000")
        A(f"v_mov_b32 v{vT+3}, v{vKa}")
        A(f"s_mov_b32 s{sIt}, 0")
        A.label(f"{L}_mloop")
        A(f"ds_read_b128 {k}, v{vT+3}")
        A(f"v_add_u32 v{vT+3}, {TS}, v{vT+3}")
        A(f"s_add_u32 s{sIt}, s{sIt}, 1")
        A("s_waitcnt lgkmcnt(0)")
        A(f"v_mfma_f32_32x32x16_bf16 v[{s0}:{s0+15}], {k}, {q}, 0")
        A(f"s_cmp_lt_u32 s{sIt}, 64")
        A("s_nop 11")
        for i in range(8):
            A(f"v_max3_f32 v{vT}, v{vT}, v{s0+2*i}, v{s0+2*i+1}")
        A(f"s_cbranch_scc1 {L}_mloop")
        A(f"v_mov_b32 v{vT+1}, v{vT}")
        A("s_nop 1")
        A(f"v_permlane32_swap_b32 v{vT}, v{vT+1}")
        A("s_nop 0")
        A(f"v_max_f32 v{vT}, v{vT}, v{vT+1}")
        for i in range(16):
            A(f"v_xor_b32 v{NM+i}, 0x80000000, v{vT}")
            A(f"v_mov_b32 v{O+i}, 0")
        A(f"v_mov_b32 v{vT+3}, v{vKa}")
        A(f"v_mov_b32 v{vT+4}, v{vVa}")
        A(f"v_mov_b32 v{vT+5}, v{vVb}")
        A(f"s_mov_b32 s{sIt}, 0")
        A.label(f"{L}_sloop")
        A(f"ds_read_b128 {k}, v{vT+3}")
        A(f"ds_read_b128 {va}, v{vT+4}")
        A(f"ds_read_b128 {vb}, v{vT+5}")
        for i in range(3, 6):
            A(f"v_add_u32 v{vT+i}, {TS}, v{vT+i}")
        A(f"s_add_u32 s{sIt}, s{sIt}, 1")
        A("s_waitcnt lgkmcnt(0)")
        A(f"v_mfma_f32_32x32x16_bf16 v[{s0}:{s0+15}], {k}, {q}, v[{NM}:{NM+15}]")
        A(f"s_cmp_lt_u32 s{sIt}, 64")
        A("s_nop 11")
        for i in range(16):
            A(f"v_exp_f32 v{s0+i}, v{s0+i}")
        A("s_nop 1")
        A(f"v_smfmac_f32_32x32x32_bf16 {o}, {va}, v[{s0}:{s0+7}], v{vIdx}")
        A(f"v_smfmac_f32_32x32x32_bf16 {o}, {vb}, v[{s0+8}:{s0+15}], v{vIdx}")
        A("s_nop 7")
        A(f"s_cbranch_scc1 {L}_sloop")
        A("s_nop 7")
        A(f"v_rcp_f32 v{vT+2}, v{O+8}")
        A("s_nop 0")
        A(f"s_branch {L}_fin")
    tail(slow)
```

```python
from common import *

WS_WO = 20 * MB
FZ_END = 21 * MB
KVP_Q = 544
KVP_B = 4 * KVP_Q
F1 = WS_F
F1L = WS_F + 65536
F2 = WS_F + 2 * 65536
F3 = WS_F + 4 * 65536

LDS_TOTAL = 163840
SLOT = 28672
RING = 20480
def slot(i): return RING + (i % 5) * SLOT
A_SLOT = [slot(i) for i in range(8)]
B_SLOT = [slot(3), slot(4), slot(0), slot(1)]
TS = 2064
KVBASE = LDS_TOTAL - 64 * TS
POS0 = 24
PHI_RS = 72
L_PHI = 0
L_WOS = 0
L_GW = 4096
L_KVB = 0
L_WPHI = 18432
L_GX = 19456
L_VB = 20480
VB_RS = 1040
L_QX = slot(0) + 24576

sWave = 3
pX, pWA, pWOA, pBX, pWB, pPHI, pWOB, pGATE, pOUT, pDBG, pWS = 4, 6, 8, 10, 12, 14, 16, 18, 20, 22, 24
rX, rW0, rW1, rWS, rM, rM2 = 28, 32, 36, 44, 48, 52
sRB, sCT, sSt = 56, 57, 60
sF1, sF1L, sOo, sF2, sF3 = 61, 62, 63, 64, 65
sHead, sQB = 66, 67
sT, sT2, sT3 = 68, 69, 70
sC = 71
sTB, sHB = 58, 59
S0 = 72
vL, vL16 = 250, 251
vGB = 247
RWS = f"s[{rWS}:{rWS+3}]"
SPIN = 0x8000
cKQ = 112

def R(r):
    return f"s[{r}:{r+3}]"

class Track:
    def __init__(self, A, name, mx):
        self.A, self.name, self.mx, self.q = A, name, mx, []
    def __call__(self, ins, tag=None):
        self.A(ins); self.q.append(tag)
    def n(self, tag):
        return len(self.q) - 1 - max(i for i, x in enumerate(self.q) if x == tag)
    def wait(self, tag):
        n = self.n(tag)
        if self.name == "vmcnt":
            assert n <= self.mx
        self.A(f"s_waitcnt {self.name}({min(n, self.mx)})")
```

```python
import sys
sys.path.insert(0, "gen")
from fx_common import *
import fx1 as fz1
import fx2 as fz2

def build(path, upto=3):
    Opt.FUSED = True
    A = Asm()
    A.ws = RWS
    L = "fz_kernel"
    kernel_begin(A, L)
    fz1.prologue(A, L)
    fz1.loader(A, L)
    if upto == 1:
        A(f"s_branch {L}_cdone")
        fz1.compute(A, L)
        stamp_end(A, 0, rWS, sWave)
    else:
        fz2.gen(A, L, upto)
    A.label(f"{L}_exit")
    A("s_endpgm")
    for t in A.tails:
        A.lines += t
    A.label(f"{L}_last")
    out = HEADER
    out += f"; @launch kernel={L} grid=(256,1,1) block=(512,1,1) lds={LDS_TOTAL}\n"
    out += '.amdgcn_target "amdgcn-amd-amdhsa--gfx950"\n.text\n'
    out += A.text()
    out += '.section .rodata,"a"\n'
    out += kernel_desc(L, 256, 102)
    open(path, "w").write(out)

if __name__ == "__main__":
    upto = 3
    Opt.PLAIN = True
    for a in list(sys.argv[1:]):
        if a == "--stamp":
            Opt.STAMP = True; sys.argv.remove(a)
        elif a == "--sc1":
            Opt.PLAIN = False; sys.argv.remove(a)
        elif a.startswith("--upto="):
            upto = int(a[7:]); sys.argv.remove(a)
        elif a.startswith("--p1:") or a.startswith("--p2:"):
            k, v = a[5:].split("=")
            setattr(fz1.P1Opt if a[3] == "1" else fz2.P2Opt, k, eval(v)); sys.argv.remove(a)
    build(sys.argv[1], upto)
```

```python
import sys, re
src, out, mul, mode = sys.argv[1:5]
L = open(src).read().split("\n")
i0 = next(i for i, l in enumerate(L) if "s_load_dwordx16 s[4:19]" in l)
ia = next(i for i, l in enumerate(L) if "buffer_atomic_add" in l)
ie = next(i for i, l in enumerate(L) if l.startswith("    buffer_store_dwordx4") and "s[28:31], s96 offen" in l)
o = []
for i, l in enumerate(L):
    if i == i0: o += ["    s_memrealtime s[80:81]"]
    o.append(l)
    if i == ia:
        o += ["    s_not_b32 s82, s80", "    v_mov_b32 v255, s82", "    buffer_atomic_umax v255, off, s[28:31], s79 offset:4 sc1"]
    if i == ie:
        o += f"""    v_and_b32 v1, 7, v250
    v_lshlrev_b32 v1, 5, v1
    buffer_load_dword v2, v1, s[32:35], 0 offen offset:4 sc1
    s_waitcnt vmcnt(0)""".split("\n")
        if mode == "g":
            o += ["    s_mov_b32 m0, s54", "    s_nop 3", "    v_readlane_b32 s82, v2, m0"]
        else:
            o += ["    v_readlane_b32 s82, v2, 0"]
            for n in range(1, 8): o += [f"    v_readlane_b32 s83, v2, {n}", "    s_nop 3", "    s_max_u32 s82, s82, s83"]
        o += f"""    s_nop 3
    s_not_b32 s82, s82
    s_memrealtime s[86:87]
    s_waitcnt lgkmcnt(0)
    s_sub_u32 s84, s80, s82
    s_max_i32 s84, s84, 0
    s_mul_i32 s84, s84, {mul}
    s_min_u32 s84, s84, 20000
fz_kernel_dly:
    s_memrealtime s[82:83]
    s_waitcnt lgkmcnt(0)
    s_sub_u32 s85, s82, s86
    s_cmp_lt_u32 s85, s84
    s_cbranch_scc1 fz_kernel_dly""".split("\n")
open(out, "w").write("\n".join(o))
```
